```python
import torch

def _softmax(x, axis=-1):
    return torch.softmax(x, dim=axis)
def _gelu(x):
    return torch.nn.functional.gelu(x, approximate="tanh")
def _silu(x):
    return torch.nn.functional.silu(x)
def _sigmoid(x):
    return torch.sigmoid(x)
def _layernorm(x, axis=-1, eps=1e-5):
    m = x.mean(dim=axis, keepdim=True)
    v = x.var(dim=axis, keepdim=True, unbiased=False)
    return (x - m) / torch.sqrt(v + eps)
def _scatter_add(tgt, idx, src, axis=0):
    return tgt.clone().index_add_(axis, idx, src)
def _segment_sum(src, seg, n):
    out = torch.zeros((n,) + src.shape[1:], dtype=src.dtype)
    return out.index_add_(0, seg, src)
def _pad(x, pw):
    flat = tuple(v for pair in reversed(pw) for v in pair)
    return torch.nn.functional.pad(x, flat)

kernel_name = 'standalone__se_block__vision'

def setup_inputs():

    _w = (lambda a: (lambda t: t.to(torch.bfloat16) if t.is_floating_point() else t)(torch.as_tensor(a)))
    H = W = 512
    C = 96; r = max(C // 16, 4)
    return {
        "x": _w((lambda *s: torch.randn(*s, dtype=torch.bfloat16) * 3.2)(1, H, W, C)),
        "w_down": _w((lambda *s: torch.randn(*s, dtype=torch.bfloat16) * 12.8)(C, r)),
        "w_up": _w((lambda *s: torch.randn(*s, dtype=torch.bfloat16) * 3.2)(r, C)),
    }

def reference(x, w_down, w_up):
    s = x.mean(axis=(1, 2))
    s = _sigmoid(_silu(s @ w_down) @ w_up)
    return x * s[:, None, None, :]
```

```python
import argparse
import struct
import sys

XBYTES = 512 * 512 * 96 * 2
NWG = 256
KNAME = "standalone__se_block__vision_kernel"

HEADER = """; Kernarg layout for this problem (48 bytes, ptrs only, base s[0:1]):
"""


def f2u(x):
    return struct.unpack("<I", struct.pack("<f", x))[0]


class Asm:
    def __init__(self):
        self.l = []

    def __call__(self, s):
        for line in s.strip("\n").split("\n"):
            self.l.append(line)

    def i(self, s, c=None):
        self.l.append("    " + s + (f"    ; {c}" if c else ""))

    def text(self):
        return "\n".join(self.l) + "\n"


def gen(o):
    W = o.W
    L = 256 // W
    UNIT = 768
    R = o.R
    LS = o.LS
    D = o.depth or L
    agpr = W <= 4
    a = Asm()
    i = a.i
    LDS_SCALE = W * 512
    lds = max(LDS_SCALE + 512, o.lds)
    FIN = R * 8 * LS
    a(HEADER)
    a(f"; @launch grid=({NWG},1,1) block=({W*64},1,1) lds={lds}")
    a(f""".amdgcn_target "amdgcn-amd-amdhsa--gfx950"
.text
.globl {KNAME}
.p2align 8
.type {KNAME},@function
{KNAME}:""")

    V_OFF = 1
    V_A = 2
    V_D = 6
    V_LANE = 10
    V_POLL = 11
    V_ATOM = 12
    V_FLAG = 13
    V_RED = 14
    V_SCA = 15
    V_WRA = 16
    V_PUB = 17
    V_T = 18
    V_ZA = 26
    V_WD = 27
    V_WU = 36
    V_SC = 48
    RC = min(W, 8)
    nP = max(8, R // 2 * 4, 2 * RC)
    V_X = V_SC + nP
    V_DATA = (V_X + (8 if agpr else 0) + 3) // 4 * 4
    if agpr:
        NVA = V_DATA
        NV = (NVA + 3) // 4 * 4 + 4 * L
        ACC = (NVA + 3) // 4 * 4
        dreg = lambda k: f"a[{4*k}:{4*k+3}]"
    else:
        NV = V_DATA + 4 * L
        ACC = (NV + 3) // 4 * 4
        dreg = lambda k: f"v[{V_DATA+4*k}:{V_DATA+4*k+3}]"
    assert NV <= 512 // max(1, W // 4), NV
    T = V_T
    P = V_SC

    nstamp = [0]

    def stamp():
        if not o.stamps:
            return
        k = nstamp[0]
        nstamp[0] += 1
        i(f"s_memrealtime s[{60+2*k}:{61+2*k}]")

    ldf = o.ldflags.replace("+", " ")
    stf = o.stflags.replace("+", " ")

    run = o.run
    RU = run * UNIT
    NU = L // run
    if o.layout == "wg":
        wg_stride, wave_stride, u_stride = NU * W * RU, RU, W * RU
    elif o.layout == "wave":
        wg_stride, wave_stride, u_stride = NU * W * RU, NU * RU, RU
    elif o.layout == "glob":
        wg_stride, wave_stride, u_stride = W * RU, RU, NWG * W * RU
    elif o.layout == "glob2":
        wg_stride, wave_stride, u_stride = RU, NWG * RU, NWG * W * RU
    elif o.layout == "glob3":
        wg_stride, wave_stride, u_stride = RU, NWG * NU * RU, NWG * RU
    elif o.layout == "glob4":
        wg_stride, wave_stride, u_stride = 4 * RU, RU, NWG * 4 * RU
    else:
        raise SystemExit("layout")
    assert (run - 1) * UNIT < 4096

    def mem(op, k, reg, srd, flags):
        off = (k % run) * UNIT
        offs = f" offset:{off}" if off else ""
        i(f"{op} {reg}, v{V_OFF}, {srd}, s40 offen{offs} {flags}".rstrip())
        if k % run == run - 1 and k != L - 1:
            i(f"s_add_u32 s40, s40, {u_stride}")

    stamp()
    if o.stamps:
        i("s_memtime s[88:89]")
    i("s_load_dwordx2 s[4:5], s[0:1], 0", "x")
    i("s_load_dwordx2 s[6:7], s[0:1], 8", "w_down")
    i("s_load_dwordx4 s[8:11], s[0:1], 16", "w_up, out")
    i("s_load_dwordx4 s[12:15], s[0:1], 32", "debug, ws")
    i(f"s_cmp_ge_u32 s2, {NWG}")
    i("s_cbranch_scc1 L_end")
    i(f"v_lshrrev_b32 v{T}, 6, v0")
    i(f"v_and_b32 v{V_LANE}, 63, v0")
    i(f"v_readfirstlane_b32 s3, v{T}", "wave id")
    i(f"v_and_b32 v{T+1}, 15, v0", "n = 16-byte chunk of the pixel (12 used)")
    i(f"v_bfe_u32 v{T+2}, v0, 4, 2", "q = pixel of the 4")
    i(f"v_mul_u32_u24 v{V_OFF}, 192, v{T+2}")
    i(f"v_lshl_add_u32 v{V_OFF}, v{T+1}, 4, v{V_OFF}")
    if o.xcdswz >= 2:
        g = o.xcdswz.bit_length() - 1
        i("s_and_b32 s42, s2, 7")
        i(f"s_lshl_b32 s42, s42, {g}")
        i(f"s_bfe_u32 s43, s2, {3 | (g << 16)}")
        i("s_or_b32 s42, s42, s43")
        i(f"s_andn2_b32 s43, s2, {(8 << g) - 1}")
        i("s_or_b32 s42, s42, s43")
        i(f"s_mul_i32 s41, s42, {wg_stride}")
    elif o.xcdswz:
        i("s_and_b32 s42, s2, 7")
        i("s_lshr_b32 s43, s2, 3")
        i("s_lshl_b32 s42, s42, 5")
        i("s_add_u32 s42, s42, s43")
        i(f"s_mul_i32 s41, s42, {wg_stride}")
    else:
        i(f"s_mul_i32 s41, s2, {wg_stride}")
    if o.layout == "glob4":
        i("s_and_b32 s42, s3, 3")
        i(f"s_mul_i32 s42, s42, {wave_stride}")
        i("s_add_u32 s41, s41, s42")
        i("s_lshr_b32 s42, s3, 2")
        i(f"s_mul_i32 s42, s42, {NU * u_stride}")
    else:
        i(f"s_mul_i32 s42, s3, {wave_stride}")
    i("s_add_u32 s41, s41, s42")
    i("s_mov_b32 s40, s41")
    i(f"s_mov_b32 s18, {XBYTES}")
    i("s_mov_b32 s19, 0x00020000")
    i("s_mov_b32 s44, 0x0fff0fff")
    i("s_mov_b32 s45, 0x0fff0fff")
    i(f"s_mov_b32 s22, {XBYTES}")
    i("s_mov_b32 s23, 0x00020000")
    i("s_mov_b32 s26, 0x10000000")
    i("s_mov_b32 s27, 0x00020000")
    i("s_mov_b32 s30, 256")
    i("s_mov_b32 s31, 0x00020000")
    i("s_mov_b32 s34, 1152")
    i("s_mov_b32 s35, 0x00020000")
    i("s_mov_b32 s38, 1152")
    i("s_mov_b32 s39, 0x00020000")
    i(f"v_lshlrev_b32 v{V_POLL}, 4, v{V_LANE}", "poll address: lane*16")
    i("s_or_b32 s43, s2, s3")
    i("s_waitcnt lgkmcnt(0)")
    i("s_mov_b32 s16, s4")
    i("s_mov_b32 s17, s5")
    i("s_mov_b32 s24, s14")
    i("s_mov_b32 s25, s15")
    i("s_mov_b32 s28, s12")
    i("s_mov_b32 s29, s13")
    stamp()
    if o.sync:
        i("s_cmp_lg_u32 s43, 0")
        i("s_cbranch_scc1 L_loads")
        i(f"v_lshrrev_b32 v{T}, 2, v{V_LANE}")
        i(f"v_mul_u32_u24 v{T}, {LS}, v{T}")
        i(f"v_and_b32 v{T+1}, 3, v{V_LANE}")
        i(f"v_lshl_add_u32 v{V_ZA}, v{T+1}, 4, v{T}")
        for r in range(4):
            i(f"v_mov_b32 v{P+r}, 0")
        i("s_mov_b32 s43, 0")
        for k in range(R // 2):
            i(f"buffer_store_dwordx4 v[{P}:{P+3}], v{V_ZA}, s[24:27], s43 offen sc1")
            i(f"s_add_u32 s43, s43, {16*LS}")
        if o.sync == 2:
            for k in range(R // 2):
                i(f"buffer_store_dwordx4 v[{P}:{P+3}], v{V_POLL}, s[24:27], s43 offen sc1")
                if k != R // 2 - 1:
                    i("s_add_u32 s43, s43, 1024")
        i(f"v_mov_b32 v{T+4}, 1")
        i("s_waitcnt vmcnt(0)")
        i("s_mov_b64 exec, 1")
        i(f"buffer_store_dword v{T+4}, off, s[28:31], 0 sc1")
    a("L_loads:")
    i("s_mov_b64 exec, s[44:45]")
    for k in range(min(D, L)):
        mem("buffer_load_dwordx4", k, dreg(k), "s[16:19]", ldf)
    i("s_mov_b64 exec, -1")
    if D >= L:
        stamp()
    i("s_mov_b32 s20, s10")
    i("s_mov_b32 s21, s11")
    i("s_mov_b32 s32, s6")
    i("s_mov_b32 s33, s7")
    i("s_mov_b32 s36, s8")
    i("s_mov_b32 s37, s9")
    i(f"v_and_b32 v{T}, 15, v{V_LANE}", "A[i][k] = 1 where k%8 == i (i<8): sums the 4 pixels per channel")
    i(f"v_and_b32 v{T+1}, 1, v{V_LANE}")
    i(f"v_lshlrev_b32 v{T+1}, 4, v{T+1}")
    i(f"v_mov_b32 v{T+2}, 0x3f80")
    i(f"v_lshlrev_b32 v{T+1}, v{T+1}, v{T+2}")
    i(f"v_lshrrev_b32 v{T+2}, 1, v{T}")
    for r in range(4):
        i(f"v_cmp_eq_u32 vcc, {r}, v{T+2}")
        i(f"v_mov_b32 v{V_D+r}, 0")
        i("s_nop 0")
        i(f"v_cndmask_b32 v{V_A+r}, 0, v{T+1}, vcc")
    i(f"v_bfe_u32 v{T+3}, v{V_LANE}, 4, 1")
    i(f"v_lshlrev_b32 v{T+3}, 4, v{T+3}")
    i("s_lshl_b32 s43, s3, 9")
    i(f"v_add_u32 v{T+3}, s43, v{T+3}")
    i(f"v_mul_u32_u24 v{T+5}, 43, v{T}")
    i(f"v_lshrrev_b32 v{T+5}, 8, v{T+5}")
    i(f"v_mul_u32_u24 v{T+6}, 6, v{T+5}")
    i(f"v_sub_u32 v{T+6}, v{T}, v{T+6}")
    i(f"v_lshl_add_u32 v{V_WRA}, v{T+5}, 8, v{T+3}")
    i(f"v_lshl_add_u32 v{V_WRA}, v{T+6}, 5, v{V_WRA}")
    i(f"v_lshlrev_b32 v{T+5}, 5, v{T}")
    i(f"v_add_u32 v{V_SCA}, {LDS_SCALE}, v{T+5}", "scale address: n*32")
    i(f"v_lshrrev_b32 v{T+4}, 2, v{V_LANE}")
    i(f"v_and_b32 v{T+5}, 3, v{V_LANE}")
    i(f"v_mul_u32_u24 v{V_RED}, 3, v{T+4}")
    i(f"v_add_lshl_u32 v{V_RED}, v{V_RED}, v{T+5}, 2", "reduce address: (3*(l>>2) + (l&3))*4")
    i(f"v_lshlrev_b32 v{V_PUB}, 4, v{T+4}", "publish address: granule*16")
    i(f"v_lshrrev_b32 v{T+4}, 4, v{V_LANE}")
    i(f"v_mul_u32_u24 v{T+4}, {LS}, v{T+4}")
    i(f"v_lshl_add_u32 v{V_ATOM}, v{T}, 2, v{T+4}", "atomic address: (l>>4)*LS + (l&15)*4")
    i(f"v_cmp_eq_u32 s[46:47], 3, v{T+5}", "count lanes")
    i(f"s_and_b32 s56, s2, {R-1}", "replica")
    i(f"s_mul_i32 s48, s56, {8*LS}")
    i(f"s_add_u32 s49, s48, {4*LS}")
    i("s_lshl_b32 s56, s56, 9")
    i(f"s_add_u32 s56, s56, {FIN}")
    i("s_add_u32 s57, s56, 256")
    i(f"s_mov_b32 s51, {f2u(float(NWG // R)):#x}")

    def weights_and_flag():
        lab = "L_noflag"
        i("s_cmp_lg_u32 s3, 0")
        i(f"s_cbranch_scc1 {lab}")
        for r in range(21):
            i(f"v_mov_b32 v{V_WD+r}, 0")
        i(f"v_and_b32 v{T}, 31, v{V_LANE}")
        i(f"v_lshrrev_b32 v{T+1}, 5, v{V_LANE}")
        i(f"v_mul_u32_u24 v{T+2}, 36, v{T}")
        i(f"v_mul_u32_u24 v{T+3}, 6, v{T+1}")
        i(f"v_add_u32 v{T+2}, v{T+2}, v{T+3}")
        i(f"v_lshlrev_b32 v{T+3}, 1, v{V_LANE}")
        for ii in range(3):
            for jj in range(3):
                i(f"buffer_load_short_d16_hi v{V_WD+3*ii+jj}, v{T+2}, s[32:35], 0 offen offset:{12*ii+2*jj}")
        for j in range(6):
            for h in range(2):
                i(f"buffer_load_short_d16_hi v{V_WU+2*j+h}, v{T+3}, s[36:39], 0 offen offset:{192*j+128*h}")
        if o.sync:
            i("s_mov_b64 exec, 1")
            i(f"buffer_load_dword v{V_FLAG}, off, s[28:31], 0 sc1")
            i("s_mov_b64 exec, -1")
        a(f"{lab}:")

    def mfma(k):
        i(f"v_mfma_f32_16x16x32_bf16 v[{V_D}:{V_D+3}], v[{V_A}:{V_A+3}], {dreg(k)}, v[{V_D}:{V_D+3}]")

    if D >= L:
        wk = o.wpos
        for k in range(L):
            if k == wk:
                weights_and_flag()
            i(f"s_waitcnt vmcnt({min(63, L-1-k)})")
            mfma(k)
    else:
        i("s_mov_b64 exec, s[44:45]")
        for k in range(D, L):
            i(f"s_waitcnt vmcnt({D-1})")
            mem("buffer_load_dwordx4", k, dreg(k), "s[16:19]", ldf)
            mfma(k - D)
        i("s_mov_b64 exec, -1")
        stamp()
        weights_and_flag()
        for k in range(L - D, L):
            i(f"s_waitcnt vmcnt({L-1-k})")
            mfma(k)
    stamp()
    i("s_mov_b32 exec_lo, 0x0fff0fff")
    i("s_mov_b32 exec_hi, 0")
    i("s_nop 5")
    i(f"ds_write_b128 v{V_WRA}, v[{V_D}:{V_D+3}]")
    i("s_mov_b64 exec, -1")
    i("s_waitcnt lgkmcnt(0)")
    i("s_barrier")
    i("s_cmp_lg_u32 s3, 0")
    i("s_cbranch_scc1 L_wait2")
    S0, S1 = T, T + 1
    first = True
    for c0 in range(0, W, RC):
        n = RC
        for k in range(n):
            i(f"ds_read2st64_b32 v[{P+2*k}:{P+2*k+1}], v{V_RED} offset0:{2*(c0+k)} offset1:{2*(c0+k)+1}")
        if first and o.sync:
            i(f"v_readfirstlane_b32 s43, v{V_FLAG}")
            i("s_mov_b32 s50, 0x200000")
        step = 1
        while step < n:
            for k in range(0, n, 2 * step):
                if step == 1:
                    i(f"s_waitcnt lgkmcnt({n-2-k})")
                last = step * 2 >= n and first
                dst = S0 if last else P + 2 * k
                i(f"v_pk_add_f32 v[{dst}:{dst+1}], v[{P+2*k}:{P+2*k+1}], v[{P+2*(k+step)}:{P+2*(k+step)+1}]")
            step *= 2
        if not first:
            i(f"v_pk_add_f32 v[{S0}:{S1}], v[{S0}:{S1}], v[{P}:{P+1}]")
        first = False
    i(f"v_cndmask_b32 v{S0}, v{S0}, 1.0, s[46:47]")
    i(f"v_cndmask_b32 v{S1}, v{S1}, 1.0, s[46:47]")
    if o.sync:
        i("s_cmp_eq_u32 s43, 0")
        i("s_cbranch_scc1 L_flagspin")
        a("L_flagok:")
        if o.sync == 2:
            i(f"v_mov_b32 v{T+2}, v{S0}")
            i(f"v_mov_b32 v{T+3}, v{S1}")
            i(f"buffer_atomic_add_f32 v{S0}, v{V_ATOM}, s[24:27], s48 offen sc0")
            i(f"buffer_atomic_add_f32 v{S1}, v{V_ATOM}, s[24:27], s49 offen sc0")
            stamp()
            for k in range(R // 2):
                i(f"s_mov_b32 s{52+k}, {FIN + 1024*k}")
            i("s_mov_b32 s58, 0x11111111")
            i("s_mov_b32 s59, 0x11111111")
            for h in range(2):
                i(f"s_waitcnt vmcnt({1-h})")
                i(f"v_add_f32 v{T+2+h}, v{T+2+h}, v{S0+h}")
                i("s_nop 1")
                for r in range(4):
                    i(f"v_mov_b32_dpp v{P+4*h+r}, v{T+2+h} quad_perm:[{r},{r},{r},{r}] row_mask:0xf bank_mask:0xf")
            i(f"v_cmp_eq_f32 vcc, s51, v{P+3}")
            i(f"v_cmp_eq_f32 s[42:43], s51, v{P+7}")
            i("s_and_b64 exec, vcc, s[58:59]")
            i("s_cbranch_scc0 L_nopubA")
            i(f"buffer_store_dwordx4 v[{P}:{P+3}], v{V_PUB}, s[24:27], s56 offen sc1")
            a("L_nopubA:")
            i("s_and_b64 exec, s[42:43], s[58:59]")
            i("s_cbranch_scc0 L_nopubB")
            i(f"buffer_store_dwordx4 v[{P+4}:{P+7}], v{V_PUB}, s[24:27], s57 offen sc1")
            a("L_nopubB:")
            i("s_mov_b64 exec, -1")
            i("s_nop 0")
        else:
            i(f"buffer_atomic_add_f32 v{S0}, v{V_ATOM}, s[24:27], s48 offen")
            i(f"buffer_atomic_add_f32 v{S1}, v{V_ATOM}, s[24:27], s49 offen")
            stamp()
            i(f"v_lshrrev_b32 v{T}, 2, v{V_LANE}")
            i(f"v_mul_u32_u24 v{T}, {LS}, v{T}")
            i(f"v_and_b32 v{T+1}, 3, v{V_LANE}")
            i(f"v_lshl_add_u32 v{V_POLL}, v{T+1}, 4, v{T}")
            for k in range(R // 2):
                i(f"s_mov_b32 s{52+k}, {16*LS*k}")
        i("s_mov_b32 s50, 0x200000")
        if o.presleep:
            i(f"s_sleep {o.presleep}")
        a("L_poll:")
        if o.pollsleep:
            i(f"s_sleep {o.pollsleep}")
        for k in range(R // 2):
            i(f"buffer_load_dwordx4 v[{P+4*k}:{P+4*k+3}], v{V_POLL}, s[24:27], s{52+k} offen sc1")
        i("s_sub_u32 s50, s50, 1")
        i("s_cbranch_scc1 L_polldone")
        for k in range(R // 2):
            i(f"s_waitcnt vmcnt({R//2-1-k})")
            if k == 0:
                i(f"v_cmp_eq_f32 vcc, s51, v{P+3}")
            else:
                i(f"v_cmp_eq_f32 s[42:43], s51, v{P+4*k+3}")
                i("s_and_b64 vcc, vcc, s[42:43]")
        i("s_cmp_eq_u64 vcc, -1")
        i("s_cbranch_scc0 L_poll")
        a("L_polldone:")
        i("s_waitcnt vmcnt(0)")
        stamp()
        n = R // 2
        step = 1
        while step < n:
            for k in range(0, n, 2 * step):
                i(f"v_pk_add_f32 v[{P+4*k}:{P+4*k+1}], v[{P+4*k}:{P+4*k+1}], v[{P+4*(k+step)}:{P+4*(k+step)+1}]")
                i(f"v_add_f32 v{P+4*k+2}, v{P+4*k+2}, v{P+4*(k+step)+2}")
            step *= 2
        for r in range(3):
            i(f"v_mov_b32 v{P+4+r}, v{P+r}")
        i("s_mov_b32 s43, 0x36800000", "2^-18")
        i("s_nop 0")
        for r in range(3):
            i(f"v_permlane32_swap_b32 v{P+4+r}, v{P+r}")
        for r in range(3):
            i(f"v_add_f32 v{P+r}, v{P+r}, v{P+4+r}")
    else:
        stamp()
        stamp()
        for r in range(3):
            i(f"v_mov_b32 v{P+r}, v{S0}")
        i("s_mov_b32 s43, 0x36800000")
    for r in range(3):
        i(f"v_mul_f32 v{P+r}, s43, v{P+r}")
    i(f"v_cvt_pk_bf16_f32 v{P+4}, v{P}, v{P+1}", "mean rounded to bf16")
    i(f"v_cvt_pk_bf16_f32 v{P+5}, v{P+2}, v{P+2}")
    i(f"v_lshlrev_b32 v{P}, 16, v{P+4}")
    i(f"v_and_b32 v{P+1}, 0xffff0000, v{P+4}")
    i(f"v_lshlrev_b32 v{P+2}, 16, v{P+5}")
    H = P + 4
    for jj in range(3):
        i(f"v_mul_f32 v{H+jj}, v{P}, v{V_WD+jj}")
    for ii in (1, 2):
        for jj in range(3):
            i(f"v_fmac_f32 v{H+jj}, v{P+ii}, v{V_WD+3*ii+jj}")
    for dpp in ("quad_perm:[1,0,3,2]", "quad_perm:[2,3,0,1]", "row_half_mirror", "row_mirror"):
        for jj in range(3):
            i(f"v_add_f32_dpp v{H+jj}, v{H+jj}, v{H+jj} {dpp} row_mask:0xf bank_mask:0xf")
    for jj in range(3):
        i(f"v_add_f32_dpp v{H+jj}, v{H+jj}, v{H+jj} row_bcast:15 row_mask:0xa bank_mask:0xf")
    i("s_mov_b32 vcc_lo, 0x22222222")
    i("s_mov_b32 vcc_hi, 0x22222222")
    i("s_mov_b32 s42, 0x44444444")
    i("s_mov_b32 s43, 0x44444444")
    i(f"v_cndmask_b32 v{H}, v{H}, v{H+1}, vcc")
    i(f"v_cndmask_b32 v{H}, v{H}, v{H+2}, s[42:43]")
    i(f"v_cvt_pk_bf16_f32 v{H}, v{H}, v{H}")
    i(f"v_lshlrev_b32 v{H}, 16, v{H}", "h (bf16)")
    i(f"v_mul_f32 v{P}, 0xbfb8aa3b, v{H}")
    i(f"v_exp_f32 v{P}, v{P}")
    i("s_nop 0")
    i(f"v_add_f32 v{P}, 1.0, v{P}")
    i(f"v_rcp_f32 v{P}, v{P}")
    i("s_nop 0")
    i(f"v_mul_f32 v{H}, v{H}, v{P}")
    i(f"v_cvt_pk_bf16_f32 v{H}, v{H}, v{H}")
    i(f"v_lshlrev_b32 v{H}, 16, v{H}", "silu(h) (bf16)")
    i("s_nop 0")
    for j in range(6):
        i(f"v_readlane_b32 s{52+j}, v{H}, {16 + (j % 3) + 32*(j//3)}")
    Z = P
    i(f"v_mul_f32 v{Z}, s52, v{V_WU}")
    i(f"v_mul_f32 v{Z+1}, s52, v{V_WU+1}")
    for j in range(1, 6):
        i(f"v_fmac_f32 v{Z}, s{52+j}, v{V_WU+2*j}")
        i(f"v_fmac_f32 v{Z+1}, s{52+j}, v{V_WU+2*j+1}")
    i(f"v_cvt_pk_bf16_f32 v{Z+2}, v{Z}, v{Z+1}")
    i(f"v_lshlrev_b32 v{Z}, 16, v{Z+2}")
    i(f"v_and_b32 v{Z+1}, 0xffff0000, v{Z+2}")
    i(f"v_mul_f32 v{Z}, 0xbfb8aa3b, v{Z}")
    i(f"v_mul_f32 v{Z+1}, 0xbfb8aa3b, v{Z+1}")
    i(f"v_exp_f32 v{Z}, v{Z}")
    i(f"v_exp_f32 v{Z+1}, v{Z+1}")
    i(f"v_lshlrev_b32 v{Z+3}, 2, v{V_LANE}")
    i(f"v_add_f32 v{Z}, 1.0, v{Z}")
    i(f"v_add_f32 v{Z+1}, 1.0, v{Z+1}")
    i(f"v_rcp_f32 v{Z}, v{Z}")
    i(f"v_rcp_f32 v{Z+1}, v{Z+1}")
    i("s_nop 0")
    i(f"v_cvt_pk_bf16_f32 v{Z+2}, v{Z}, v{Z+1}", "sigmoid (bf16)")
    i(f"v_lshlrev_b32 v{Z}, 16, v{Z+2}")
    i(f"v_and_b32 v{Z+1}, 0xffff0000, v{Z+2}")
    i(f"ds_write2st64_b32 v{Z+3}, v{Z}, v{Z+1} offset0:{LDS_SCALE//256} offset1:{LDS_SCALE//256+1}")
    i("s_waitcnt lgkmcnt(0)")
    a("L_wait2:")
    i("s_barrier")
    i(f"ds_read_b128 v[{V_SC}:{V_SC+3}], v{V_SCA}")
    i(f"ds_read_b128 v[{V_SC+4}:{V_SC+7}], v{V_SCA} offset:16")
    i("s_mov_b64 exec, s[44:45]")
    i("s_mov_b32 s40, s41")
    stamp()
    i("s_mov_b32 s43, 0xffff0000")
    SD = o.sdepth
    for k in range(L):
        if agpr:
            d = V_X + 4 * (k & 1)
            for r in range(4):
                i(f"v_accvgpr_read_b32 v{T+2*r+1}, a{4*k+r}")
            for r in range(4):
                i(f"v_lshlrev_b32 v{T+2*r}, 16, v{T+2*r+1}")
                i(f"v_and_b32 v{T+2*r+1}, s43, v{T+2*r+1}")
        else:
            d = V_DATA + 4 * k
            for r in range(4):
                i(f"v_lshlrev_b32 v{T+2*r}, 16, v{d+r}")
                i(f"v_and_b32 v{T+2*r+1}, s43, v{d+r}")
        if k == 0:
            i("s_waitcnt lgkmcnt(0)")
        for r in range(4):
            i(f"v_pk_mul_f32 v[{T+2*r}:{T+2*r+1}], v[{T+2*r}:{T+2*r+1}], v[{V_SC+2*r}:{V_SC+2*r+1}]")
        for r in range(4):
            i(f"v_cvt_pk_bf16_f32 v{d+r}, v{T+2*r}, v{T+2*r+1}")
        if SD and k >= SD:
            i(f"s_waitcnt vmcnt({SD-1})")
        mem("buffer_store_dwordx4", k, f"v[{d}:{d+3}]", "s[20:23]", stf)
    if o.stamps:
        stamp()
        i("s_waitcnt vmcnt(0)")
        stamp()
        i("s_memtime s[90:91]")
        i("s_mov_b64 exec, -1")
        i("s_getreg_b32 s42, hwreg(HW_REG_HW_ID)")
        i("s_getreg_b32 s43, hwreg(HW_REG_XCC_ID)")
        i("s_waitcnt lgkmcnt(0)")
        i(f"v_mov_b32 v{V_ZA}, 0")
        for k in range(nstamp[0]):
            i(f"v_writelane_b32 v{V_ZA}, s{60+2*k}, {k}")
        i("s_sub_u32 s90, s90, s88")
        i(f"v_writelane_b32 v{V_ZA}, s90, 11")
        i("s_sub_u32 s50, 0x200000, s50")
        i(f"v_writelane_b32 v{V_ZA}, s50, 12")
        i(f"v_writelane_b32 v{V_ZA}, s42, 14")
        i(f"v_writelane_b32 v{V_ZA}, s43, 15")
        i("s_lshl_b32 s42, s2, 4")
        i("s_add_u32 s42, s42, s3")
        i("s_lshl_b32 s42, s42, 6")
        i("s_add_u32 s42, s42, 0x4000000")
        i(f"v_lshlrev_b32 v{T}, 2, v{V_LANE}")
        i("s_mov_b64 exec, 0xffff")
        i(f"buffer_store_dword v{V_ZA}, v{T}, s[24:27], s42 offen")
        if o.probe:
            pa, pb, pk, pw = [int(x) for x in o.probe.split(",")]
            i("s_cmp_lg_u32 s3, 0")
            i("s_cbranch_scc1 L_end")
            i(f"s_cmp_lg_u32 s2, {pw}")
            i("s_cbranch_scc1 L_end")
            i(f"s_sub_u32 s42, s{60+2*pb}, s{60+2*pa}")
            i(f"s_mul_i32 s42, s42, {pk}")
            i("s_add_u32 s42, s42, 4000")
            i("s_min_u32 s42, s42, 20000")
            a("L_probe:")
            i("s_memrealtime s[50:51]")
            i("s_waitcnt lgkmcnt(0)")
            i("s_sub_u32 s43, s50, s60")
            i("s_cmp_lt_u32 s43, s42")
            i("s_cbranch_scc1 L_probe")
    a("L_end:")
    i("s_endpgm")
    if o.sync:
        a("L_flagspin:")
        i(f"buffer_load_dword v{V_FLAG}, off, s[28:31], 0 sc1")
        i("s_waitcnt vmcnt(0)")
        i(f"v_readfirstlane_b32 s43, v{V_FLAG}")
        i("s_sub_u32 s50, s50, 1")
        i("s_cbranch_scc1 L_flagok")
        i("s_cmp_eq_u32 s43, 0")
        i("s_cbranch_scc1 L_flagspin")
        i("s_branch L_flagok")
    a(f""".section .rodata,"a"
.p2align 6
.amdhsa_kernel {KNAME}
  .amdhsa_next_free_vgpr {NV}
  .amdhsa_next_free_sgpr {96 if o.stamps else 64}
  .amdhsa_accum_offset {ACC}
  .amdhsa_group_segment_fixed_size 0
  .amdhsa_kernarg_size 48
  .amdhsa_user_sgpr_count 2
  .amdhsa_user_sgpr_kernarg_segment_ptr 1
  .amdhsa_system_sgpr_workgroup_id_x 1
  .amdhsa_float_denorm_mode_32 3
.end_amdhsa_kernel""")
    return a.text()


def main():
    ap = argparse.ArgumentParser()
    ap.add_argument("-o", default="-")
    ap.add_argument("--W", type=int, default=8)
    ap.add_argument("--layout", default="glob")
    ap.add_argument("--run", type=int, default=1)
    ap.add_argument("--depth", type=int, default=0)
    ap.add_argument("--sdepth", type=int, default=0)
    ap.add_argument("--wpos", type=int, default=0)
    ap.add_argument("--xcdswz", type=int, default=0)
    ap.add_argument("--R", type=int, default=8)
    ap.add_argument("--LS", type=int, default=256)
    ap.add_argument("--lds", type=int, default=0)
    ap.add_argument("--ldflags", default="nt")
    ap.add_argument("--stflags", default="nt")
    ap.add_argument("--stamps", type=int, default=0)
    ap.add_argument("--probe", default="")
    ap.add_argument("--presleep", type=int, default=0)
    ap.add_argument("--pollsleep", type=int, default=0)
    ap.add_argument("--sync", type=int, default=2)
    o = ap.parse_args()
    t = gen(o)
    if o.o == "-":
        sys.stdout.write(t)
    else:
        open(o.o, "w").write(t)


if __name__ == "__main__":
    main()
```

```python
import argparse
import struct
import sys

XBYTES = 512 * 512 * 96 * 2
NWG = 256
KNAME = "standalone__se_block__vision_kernel"

HEADER = """; Kernarg layout for this problem (48 bytes, ptrs only, base s[0:1]):
"""


def f2u(x):
    return struct.unpack("<I", struct.pack("<f", x))[0]


class Asm:
    def __init__(self):
        self.l = []

    def __call__(self, s):
        for line in s.strip("\n").split("\n"):
            self.l.append(line)

    def i(self, s, c=None):
        self.l.append("    " + s + (f"    ; {c}" if c else ""))

    def c(self, s):
        self.l.append("    ; " + s)

    def text(self):
        return "\n".join(self.l) + "\n"


def gen(o):
    W = 8
    L = 256 // W
    UNIT = 768
    R = o.R
    LS = o.LS
    K = o.K
    NP = R // 2
    a = Asm()
    i = a.i
    LDS_ACC = 0
    LDS_SCALE = 512
    LDS_CNT = 1024
    LDS_SLOT = 1280
    lds = max(1056 if not o.slots else LDS_SLOT + W * 512, o.lds)
    FIN = R * 8 * LS
    a(HEADER)
    a(f"; @launch grid=({NWG},1,1) block=({W*64},1,1) lds={lds}")
    a(f""".amdgcn_target "amdgcn-amd-amdhsa--gfx950"
.text
.globl {KNAME}
.p2align 8
.type {KNAME},@function
{KNAME}:""")

    V_OFF = 1
    V_A = 2
    V_D = 6
    V_LANE = 10
    V_POLL = 11
    V_ATOM = 12
    V_FLAG = 13
    V_L4 = 14
    V_SCA = 15
    V_WRA = 16
    V_T = 20
    V_PUB = 28
    V_ZA = 29
    V_ONE = 30
    V_TRA = 19
    V_WD = 31
    V_WU = 40
    V_SC = 52
    V_PS = 60
    V_DATA = V_PS + max(16, 4 * NP * K)
    NV = V_DATA + 4 * L
    ACC = (NV + 3) // 4 * 4
    dreg = lambda k: f"v[{V_DATA+4*k}:{V_DATA+4*k+3}]"
    assert NV <= 256, NV
    T = V_T
    P = V_SC

    nstamp = [0]

    def stamp(k=None):
        if not o.stamps:
            return
        if k is None:
            k = nstamp[0]
            nstamp[0] += 1
        else:
            nstamp[0] = max(nstamp[0], k + 1)
        i(f"s_memrealtime s[{60+2*k}:{61+2*k}]")

    def x9(tag):
        if o.x9 == tag:
            i("s_memrealtime s[78:79]")

    ldf = o.ldflags.replace("+", " ")
    stf = o.stflags.replace("+", " ")
    stf2 = o.stflags2.replace("+", " ")
    wg_stride, wave_stride, u_stride = W * UNIT, UNIT, NWG * W * UNIT

    numa = o.numa

    def numa_group(g):
        i("s_lshr_b32 s42, s40, 21")
        if numa >= 3:
            i("s_lshr_b32 s42, s86, s42")
        i("s_xor_b32 s42, s42, s47")
        i("s_bitcmp1_b32 s42, 0")
        for c in range(4):
            i(f"s_cselect_b32 s{80+c}, s{96+c}, s{92+c}")

    def mem(op, k, reg, srd, flags):
        if numa:
            c = k % 4
            if c == 0:
                numa_group(k // 4)
            i(f"s_add_u32 s46, s40, s{80+c}")
            i(f"{op} {reg}, v{V_OFF}, {srd}, s46 offen {flags}".rstrip())
            if c == 3 and k != L - 1:
                i(f"s_add_u32 s40, s40, {128 * 49152}")
            return
        i(f"{op} {reg}, v{V_OFF}, {srd}, s40 offen {flags}".rstrip())
        if k != L - 1:
            i(f"s_add_u32 s40, s40, {u_stride}")

    stamp(0)
    if o.stamps:
        i("s_memtime s[88:89]")
    i("s_load_dwordx2 s[16:17], s[0:1], 0", "x")
    i("s_load_dwordx2 s[32:33], s[0:1], 8", "w_down")
    i("s_load_dwordx2 s[36:37], s[0:1], 16", "w_up")
    i("s_load_dwordx2 s[20:21], s[0:1], 24", "out")
    i("s_load_dwordx2 s[28:29], s[0:1], 32", "debug")
    i("s_load_dwordx2 s[24:25], s[0:1], 40", "ws")
    i(f"s_cmp_ge_u32 s2, {NWG}")
    i("s_cbranch_scc1 L_end")
    i(f"v_lshrrev_b32 v{T}, 6, v0")
    i(f"v_and_b32 v{V_LANE}, 63, v0")
    i(f"v_readfirstlane_b32 s3, v{T}", "wave id")
    i(f"v_and_b32 v{T+1}, 15, v0", "n = 16-byte chunk of the pixel (12 used)")
    i(f"v_bfe_u32 v{T+2}, v0, 4, 2", "q = pixel of the 4")
    i(f"v_mul_u32_u24 v{V_OFF}, 192, v{T+2}")
    i(f"v_lshl_add_u32 v{V_OFF}, v{T+1}, 4, v{V_OFF}")
    if numa:
        a.c("WG (h = bit 2 of the id, rank i): 48 KiB period g*128 + i, the 32 units that lie on the memory side of group h")
        i("s_lshr_b32 s42, s2, 3")
        i("s_lshl_b32 s42, s42, 2")
        i("s_and_b32 s43, s2, 3")
        i("s_or_b32 s42, s42, s43")
        i("s_mul_i32 s41, s42, 49152")
        i("s_bfe_u32 s47, s2, 0x10002")
        if numa == 2:
            i("s_xor_b32 s47, s47, 1")
        for c in range(4):
            i(f"s_add_u32 s42, s3, {8*c}", "y")
            i("s_cmp_ge_u32 s42, 11")
            i("s_cselect_b32 s43, 10, 0")
            i("s_cmp_ge_u32 s42, 22")
            i("s_cselect_b32 s43, 21, s43")
            i("s_add_u32 s43, s43, s42")
            i(f"s_mul_i32 s{92+c}, s43, 768")
            i("s_cmp_ge_u32 s42, 10")
            i("s_cselect_b32 s43, 22, 11")
            i("s_cmp_ge_u32 s42, 21")
            i("s_cselect_b32 s43, 32, s43")
            i("s_add_u32 s43, s43, s42")
            i(f"s_mul_i32 s{96+c}, s43, 768")
    elif o.xcdswz >= 2:
        g = o.xcdswz.bit_length() - 1
        a.c("groups of WGs with equal id mod 8 get neighbouring addresses (speed only)")
        i("s_and_b32 s42, s2, 7")
        i(f"s_lshl_b32 s42, s42, {g}")
        i(f"s_bfe_u32 s43, s2, {3 | (g << 16)}")
        i("s_or_b32 s42, s42, s43")
        i(f"s_andn2_b32 s43, s2, {(8 << g) - 1}")
        i("s_or_b32 s42, s42, s43")
        i(f"s_mul_i32 s41, s42, {wg_stride}")
    else:
        i(f"s_mul_i32 s41, s2, {wg_stride}")
    if not numa:
        i(f"s_mul_i32 s42, s3, {wave_stride}")
        i("s_add_u32 s41, s41, s42")
    i("s_mov_b32 s40, s41")
    i(f"s_mov_b32 s18, {XBYTES}")
    i("s_mov_b32 s19, 0x00020000")
    i(f"s_mov_b32 s22, {XBYTES}")
    i("s_mov_b32 s23, 0x00020000")
    i("s_mov_b32 s26, 0x10000000")
    i("s_mov_b32 s27, 0x00020000")
    i("s_mov_b32 s30, 256")
    i("s_mov_b32 s31, 0x00020000")
    i("s_mov_b32 s34, 1152")
    i("s_mov_b32 s35, 0x00020000")
    i("s_mov_b32 s38, 1152")
    i("s_mov_b32 s39, 0x00020000")
    i("s_mov_b32 s44, 0x0fff0fff")
    i("s_mov_b32 s45, 0x0fff0fff")
    PS = o.PS
    i(f"v_and_b32 v{T+3}, 3, v{V_LANE}")
    i(f"v_lshrrev_b32 v{T+4}, 2, v{V_LANE}")
    i(f"v_mul_u32_u24 v{T+4}, {PS}, v{T+4}")
    i(f"v_lshl_add_u32 v{V_POLL}, v{T+3}, 4, v{T+4}", "poll address: (l>>2)*PS + (l&3)*16")
    i(f"v_lshlrev_b32 v{V_L4}, 2, v{V_LANE}")
    a.c("LDS init: channel sums 0, count words 1.0, arrival counter 0 (every wave writes the same words)")
    i("s_mov_b32 s6, 0x88888888")
    i("s_mov_b32 s7, 0x88888888")
    i(f"v_cndmask_b32 v{T+3}, 0, 1.0, s[6:7]")
    i(f"v_mov_b32 v{T+4}, 0")
    i(f"ds_write2st64_b32 v{V_L4}, v{T+3}, v{T+3} offset0:0 offset1:1")
    i(f"ds_write_b32 v{T+4}, v{T+4} offset:{LDS_CNT}")
    i("s_or_b32 s43, s2, s3")
    i("s_mov_b64 exec, s[44:45]")
    i("s_waitcnt lgkmcnt(0)")
    if numa >= 3:
        i("s_add_u32 s86, s24, 0x5000000")
        i("s_addc_u32 s87, s25, 0")
        i(f"s_load_dword s86, s[86:87], {4 * (numa - 3)}")
        i("s_waitcnt lgkmcnt(0)")
    stamp(1)
    for k in range(L):
        mem("buffer_load_dwordx4", k, dreg(k), "s[16:19]", ldf)
        if k == o.bar0:
            i("s_barrier", "LDS init done in every wave")
            i("s_cmp_eq_u32 s43, 0")
            i("s_cbranch_scc1 L_zero")
            a("L_loads:")
    i("s_mov_b64 exec, 1")
    i(f"buffer_load_dword v{V_FLAG}, off, s[28:31], 0 sc1", "zeroing-done flag")
    NX = 1
    if o.touch:
        i(f"s_mov_b32 s42, {o.touch}")
        i(f"buffer_load_dword v{V_ZA}, off, s[24:27], s42", "translation warm-up for the d_ws page")
        NX = 2
    i("s_mov_b64 exec, -1")
    stamp(2)
    i(f"v_and_b32 v{T}, 15, v{V_LANE}", "A[i][k] = 1 where k%8 == i (i<8): sums the 4 pixels per channel")
    i(f"v_and_b32 v{T+1}, 1, v{V_LANE}")
    i(f"v_lshlrev_b32 v{T+1}, 4, v{T+1}")
    i(f"v_mov_b32 v{T+2}, 0x3f80")
    i(f"v_lshlrev_b32 v{T+1}, v{T+1}, v{T+2}")
    i(f"v_lshrrev_b32 v{T+2}, 1, v{T}")
    for r in range(4):
        i(f"v_cmp_eq_u32 vcc, {r}, v{T+2}")
        i(f"v_mov_b32 v{V_D+r}, 0")
        i("s_nop 0")
        i(f"v_cndmask_b32 v{V_A+r}, 0, v{T+1}, vcc")
    a.c("LDS add addresses: ch = 8n + 4u + r, word = ch + ch/3")
    i(f"v_bfe_u32 v{T+3}, v{V_LANE}, 4, 1")
    i(f"v_lshlrev_b32 v{T+3}, 2, v{T+3}")
    i(f"v_lshl_add_u32 v{T+3}, v{T}, 3, v{T+3}")
    if o.slots:
        a.c("slot write address: LDS_SLOT + wave*512 + (n/6)*256 + (n%6)*32 + (u&1)*16; read address (3*(l>>2) + (l&3))*4")
        i(f"v_bfe_u32 v{T+3}, v{V_LANE}, 4, 1")
        i(f"v_lshlrev_b32 v{T+3}, 4, v{T+3}")
        i("s_lshl_b32 s42, s3, 9")
        i(f"s_add_u32 s42, s42, {LDS_SLOT}")
        i(f"v_add_u32 v{T+3}, s42, v{T+3}")
        i(f"v_mul_u32_u24 v{T+5}, 43, v{T}")
        i(f"v_lshrrev_b32 v{T+5}, 8, v{T+5}")
        i(f"v_mul_u32_u24 v{T+6}, 6, v{T+5}")
        i(f"v_sub_u32 v{T+6}, v{T}, v{T+6}")
        i(f"v_lshl_add_u32 v{V_WRA}, v{T+5}, 8, v{T+3}")
        i(f"v_lshl_add_u32 v{V_WRA}, v{T+6}, 5, v{V_WRA}")
        i(f"v_lshrrev_b32 v{T+4}, 2, v{V_LANE}")
        i(f"v_and_b32 v{T+5}, 3, v{V_LANE}")
        i(f"v_mul_u32_u24 v{V_WRA+1}, 3, v{T+4}")
        i(f"v_add_lshl_u32 v{V_WRA+1}, v{V_WRA+1}, v{T+5}, 2")
        i("s_mov_b32 s84, 0x88888888")
        i("s_mov_b32 s85, 0x88888888")
    for r in range(4 if not o.slots else 0):
        i(f"v_add_u32 v{T+4}, {r}, v{T+3}")
        i(f"v_mul_u32_u24 v{T+5}, 43, v{T+4}")
        i(f"v_lshrrev_b32 v{T+5}, 7, v{T+5}")
        i(f"v_add_lshl_u32 v{V_WRA+r}, v{T+4}, v{T+5}, 2")
    i(f"v_lshlrev_b32 v{T+5}, 5, v{T}")
    i(f"v_add_u32 v{V_SCA}, {LDS_SCALE}, v{T+5}", "scale address: n*32")
    i(f"v_lshrrev_b32 v{T+4}, 2, v{V_LANE}")
    G = max(1, o.G)
    CS = R * 8 * PS + o.cpad
    if o.G:
        assert o.slots
        i(f"v_and_b32 v{T+4}, 3, v{T+4}", "copy")
        i(f"v_mul_u32_u24 v{V_PUB}, {CS}, v{T+4}")
        i(f"v_and_b32 v{T+5}, 3, v{V_LANE}")
        i(f"v_lshl_add_u32 v{V_PUB}, v{T+5}, 4, v{V_PUB}")
        i(f"v_lshrrev_b32 v{T+4}, 4, v{V_LANE}")
        i(f"v_lshlrev_b32 v{V_TRA}, 6, v{T+4}")
        i(f"v_lshl_add_u32 v{V_TRA}, v{T+5}, 4, v{V_TRA}", "transpose address: line*64 + granule*16")
    else:
        i(f"v_and_b32 v{T+4}, 3, v{T+4}")
        i(f"v_lshlrev_b32 v{V_PUB}, 4, v{T+4}")
        i(f"v_lshrrev_b32 v{T+4}, 4, v{V_LANE}")
    i(f"s_mov_b32 s42, {PS}")
    i(f"v_mad_u32_u24 v{V_PUB}, v{T+4}, s42, v{V_PUB}", "publish address: copy*CS + line*PS + granule*16")
    i(f"v_mul_u32_u24 v{T+4}, {LS}, v{T+4}")
    i(f"v_lshl_add_u32 v{V_ATOM}, v{T}, 2, v{T+4}", "atomic address: (l>>4)*LS + (l&15)*4")
    i(f"v_mov_b32 v{V_ONE}, 1")
    i(f"v_mov_b32 v{T+6}, {LDS_CNT}")
    i(f"s_and_b32 s56, s2, {R-1}", "replica")
    i(f"s_mul_i32 s48, s56, {8*LS}")
    i(f"s_add_u32 s49, s48, {4*LS}")
    i(f"s_mul_i32 s56, s56, {8*PS}")
    i(f"s_add_u32 s56, s56, {FIN}")
    i(f"s_add_u32 s57, s56, {4*PS}")
    if G == 8:
        i(f"s_add_u32 s58, s56, {4*CS}")
        i(f"s_add_u32 s59, s57, {4*CS}")
    i(f"s_mov_b32 s51, {f2u(float(NWG // R)):#x}")
    for k in range(NP):
        if k == 0:
            i(f"s_and_b32 s52, s2, {G-1}", "copy this WG polls")
            i(f"s_mul_i32 s52, s52, {CS}")
            i(f"s_add_u32 s52, s52, {FIN}")
        else:
            i(f"s_add_u32 s{52+k}, s52, {16*PS*k}")
    pm = {0: 0x11111111, 1: 0x000f000f, 2: 0x00ff00ff, 4: 0xffffffff, 8: 0xffffffff}[o.G]
    i(f"s_mov_b32 s6, {pm:#x}")
    i(f"s_mov_b32 s7, {pm:#x}")
    i("s_mov_b32 s4, 0x22222222")
    i("s_mov_b32 s5, 0x22222222")
    i("s_mov_b32 s14, 0x44444444")
    i("s_mov_b32 s15, 0x44444444")
    i("s_mov_b32 s50, 0x200000", "spin budget")
    a.c("wave 0 fetches the weights (its counted waits below only get stricter)")
    i("s_cmp_lg_u32 s3, 0")
    i("s_cbranch_scc1 L_now")
    for r in range(21):
        i(f"v_mov_b32 v{V_WD+r}, 0")
    i(f"v_and_b32 v{T}, 31, v{V_LANE}")
    i(f"v_lshrrev_b32 v{T+1}, 5, v{V_LANE}")
    i(f"v_mul_u32_u24 v{T+2}, 36, v{T}")
    i(f"v_mul_u32_u24 v{T+3}, 6, v{T+1}")
    i(f"v_add_u32 v{T+2}, v{T+2}, v{T+3}")
    i(f"v_lshlrev_b32 v{T+3}, 1, v{V_LANE}")
    for ii in range(3):
        for jj in range(3):
            i(f"buffer_load_short_d16_hi v{V_WD+3*ii+jj}, v{T+2}, s[32:35], 0 offen offset:{12*ii+2*jj}")
    for j in range(6):
        for h in range(2):
            i(f"buffer_load_short_d16_hi v{V_WU+2*j+h}, v{T+3}, s[36:39], 0 offen offset:{192*j+128*h}")
    a("L_now:")
    for k in range(L):
        i(f"s_waitcnt vmcnt({L-1-k+NX})")
        i(f"v_mfma_f32_16x16x32_bf16 v[{V_D}:{V_D+3}], v[{V_A}:{V_A+3}], {dreg(k)}, v[{V_D}:{V_D+3}]")
    stamp(3)
    if o.stamps:
        i("s_mov_b32 s68, 0")
        i("s_mov_b32 s78, 0")
    S0, S1 = T, T + 1
    i("s_mov_b32 exec_lo, 0x0fff0fff")
    i("s_mov_b32 exec_hi, 0")
    i("s_waitcnt vmcnt(0)")
    i(f"v_readfirstlane_b32 s43, v{V_FLAG}")
    i("s_nop 3")
    if o.slots:
        i(f"ds_write_b128 v{V_WRA}, v[{V_D}:{V_D+3}]")
    else:
        for r in range(4):
            i(f"ds_add_f32 v{V_WRA+r}, v{V_D+r}")
    i("s_mov_b64 exec, 1")
    i(f"ds_add_rtn_u32 v{T+7}, v{T+6}, v{V_ONE}")
    i("s_mov_b64 exec, -1")
    Q = V_PS
    if o.slots:
        for k in range(W):
            i(f"ds_read2st64_b32 v[{Q+2*k}:{Q+2*k+1}], v{V_WRA+1} offset0:{LDS_SLOT//256+2*k} offset1:{LDS_SLOT//256+2*k+1}")
    else:
        i(f"ds_read2st64_b32 v[{S0}:{S1}], v{V_L4} offset0:0 offset1:1")
    i("s_cmp_eq_u32 s43, 0")
    i("s_cbranch_scc1 L_flagspin")
    a("L_flagok:")
    i(f"s_waitcnt lgkmcnt({W if o.slots else 1})" if not o.stamps else "s_waitcnt lgkmcnt(0)")
    i(f"v_readfirstlane_b32 s42, v{T+7}")
    i(f"s_cmp_lg_u32 s42, {W-1}")
    i("s_cbranch_scc1 L_notlast")
    a.c("last wave of the WG: add the WG sums to this WG's replica; the old values tell who came last")
    if o.slots:
        step = 1
        while step < W:
            for k in range(0, W, 2 * step):
                if step == 1:
                    i(f"s_waitcnt lgkmcnt({W-2-k})")
                dst = T + 2 if step * 2 >= W else Q + 2 * k
                i(f"v_pk_add_f32 v[{dst}:{dst+1}], v[{Q+2*k}:{Q+2*k+1}], v[{Q+2*(k+step)}:{Q+2*(k+step)+1}]")
            step *= 2
        i(f"v_cndmask_b32 v{S0}, v{T+2}, 1.0, s[84:85]")
        i(f"v_cndmask_b32 v{S1}, v{T+3}, 1.0, s[84:85]")
    else:
        i("s_waitcnt lgkmcnt(0)")
    i(f"buffer_atomic_add_f32 v{S0}, v{V_ATOM}, s[24:27], s48 offen sc0")
    i(f"buffer_atomic_add_f32 v{S1}, v{V_ATOM}, s[24:27], s49 offen sc0")
    stamp(4)
    if o.slots:
        i(f"v_cndmask_b32 v{T+2}, v{T+2}, 1.0, s[84:85]")
        i(f"v_cndmask_b32 v{T+3}, v{T+3}, 1.0, s[84:85]")
    else:
        i(f"ds_read2st64_b32 v[{T+2}:{T+3}], v{V_L4} offset0:0 offset1:1")
    if not o.latebar:
        i("s_barrier")
    i("s_waitcnt vmcnt(1) lgkmcnt(0)")
    i(f"v_add_f32 v{T+2}, v{T+2}, v{S0}")
    i("s_waitcnt vmcnt(0)")
    i(f"v_add_f32 v{T+3}, v{T+3}, v{S1}")
    x9("atom")
    if o.G == 0:
        i(f"v_mov_b32_dpp v{P+3}, v{T+2} quad_perm:[3,3,3,3] row_mask:0xf bank_mask:0xf")
        i(f"v_mov_b32 v{P}, v{T+2}")
        i(f"v_mov_b32_dpp v{P+7}, v{T+3} quad_perm:[3,3,3,3] row_mask:0xf bank_mask:0xf")
        i(f"v_cmp_eq_f32 vcc, s51, v{P+3}")
        i(f"v_mov_b32_dpp v{P+1}, v{T+2} quad_perm:[1,1,1,1] row_mask:0xf bank_mask:0xf")
        i(f"v_cmp_eq_f32 s[42:43], s51, v{P+7}")
        i(f"v_mov_b32_dpp v{P+2}, v{T+2} quad_perm:[2,2,2,2] row_mask:0xf bank_mask:0xf")
        i(f"v_mov_b32 v{P+4}, v{T+3}")
        i(f"v_mov_b32_dpp v{P+5}, v{T+3} quad_perm:[1,1,1,1] row_mask:0xf bank_mask:0xf")
        i(f"v_mov_b32_dpp v{P+6}, v{T+3} quad_perm:[2,2,2,2] row_mask:0xf bank_mask:0xf")
        i("s_and_b64 exec, vcc, s[6:7]")
        i("s_cbranch_scc0 L_nopubA")
        i(f"buffer_store_dwordx4 v[{P}:{P+3}], v{V_PUB}, s[24:27], s56 offen sc1")
        a("L_nopubA:")
        i("s_and_b64 exec, s[42:43], s[6:7]")
        i("s_cbranch_scc0 L_nopubB")
        i(f"buffer_store_dwordx4 v[{P+4}:{P+7}], v{V_PUB}, s[24:27], s57 offen sc1")
    else:
        a.c("transpose through LDS: lane (line, copy, granule) gets one whole 16-byte granule")
        i(f"ds_write2st64_b32 v{V_L4}, v{T+2}, v{T+3} offset0:0 offset1:1")
        i(f"ds_read_b128 v[{P}:{P+3}], v{V_TRA}")
        i(f"ds_read_b128 v[{P+4}:{P+7}], v{V_TRA} offset:256")
        i("s_waitcnt lgkmcnt(1)" if not o.stamps else "s_waitcnt lgkmcnt(0)")
        i(f"v_cmp_eq_f32 vcc, s51, v{P+3}")
        i("s_waitcnt lgkmcnt(0)")
        i(f"v_cmp_eq_f32 s[42:43], s51, v{P+7}")
        i("s_and_b64 exec, vcc, s[6:7]")
        i("s_cbranch_scc0 L_nopubA")
        for j in range(max(1, o.G // 4)):
            i(f"buffer_store_dwordx4 v[{P}:{P+3}], v{V_PUB}, s[24:27], s{56+2*j} offen sc1")
        a("L_nopubA:")
        i("s_and_b64 exec, s[42:43], s[6:7]")
        i("s_cbranch_scc0 L_nopubB")
        for j in range(max(1, o.G // 4)):
            i(f"buffer_store_dwordx4 v[{P+4}:{P+7}], v{V_PUB}, s[24:27], s{57+2*j} offen sc1")
    a("L_nopubB:")
    i("s_mov_b64 exec, -1")
    if not o.latebar:
        i("s_branch L_role")
    a("L_notlast:")
    i("s_barrier")
    a("L_role:")
    i("s_cmp_lg_u32 s3, 0")
    i("s_cbranch_scc1 L_wait2")
    a.c("wave 0: poll the published replica sums")

    def issue(s):
        for k in range(NP):
            b = V_PS + 4 * (NP * s + k)
            i(f"buffer_load_dwordx4 v[{b}:{b+3}], v{V_POLL}, s[24:27], s{52+k} offen sc1")

    for s in range(K - 1):
        issue(s)
    i("s_mov_b32 s43, 0x36800000", "2^-18 folded into w_down")
    for r in range(9):
        i(f"v_mul_f32 v{V_WD+r}, s43, v{V_WD+r}")
    a("L_poll:")
    for s in range(K):
        if o.pollsleep:
            i(f"s_sleep {o.pollsleep}")
        issue((s + K - 1) % K)
        for k in range(NP):
            b = V_PS + 4 * (NP * s + k)
            i(f"s_waitcnt vmcnt({NP*K-1-k})")
            if k == 0:
                i(f"v_cmp_eq_f32 vcc, s51, v{b+3}")
            else:
                i(f"v_cmp_eq_f32 s[42:43], s51, v{b+3}")
                i("s_and_b64 vcc, vcc, s[42:43]")
        i("s_cmp_eq_u64 vcc, -1")
        i(f"s_cbranch_scc1 L_done{s}")
    i("s_sub_u32 s50, s50, 1")
    i("s_cbranch_scc0 L_poll")
    for s in range(K):
        a(f"L_done{s}:")
        b = V_PS + 4 * NP * s
        n = NP
        step = 1
        while step < n:
            for k in range(0, n, 2 * step):
                dst = P if step * 2 >= n else b + 4 * k
                i(f"v_pk_add_f32 v[{dst}:{dst+1}], v[{b+4*k}:{b+4*k+1}], v[{b+4*(k+step)}:{b+4*(k+step)+1}]")
                i(f"v_add_f32 v{dst+2}, v{b+4*k+2}, v{b+4*(k+step)+2}")
            step *= 2
        if n == 1:
            for r in range(3):
                i(f"v_mov_b32 v{P+r}, v{b+r}")
        if s != K - 1:
            i("s_branch L_mlp")
    a("L_mlp:")
    stamp(5)
    for r in range(3):
        i(f"v_mov_b32 v{P+4+r}, v{P+r}")
    i("s_nop 1" if not o.stamps else "s_nop 1")
    for r in range(3):
        i(f"v_permlane32_swap_b32 v{P+4+r}, v{P+r}")
    for r in range(3):
        i(f"v_add_f32 v{P+r}, v{P+r}, v{P+4+r}")
    i(f"v_cvt_pk_bf16_f32 v{P+4}, v{P}, v{P+1}", "channel sums rounded to bf16 (mean = sum * 2^-18)")
    i(f"v_cvt_pk_bf16_f32 v{P+5}, v{P+2}, v{P+2}")
    i(f"v_lshlrev_b32 v{P}, 16, v{P+4}")
    i(f"v_and_b32 v{P+1}, 0xffff0000, v{P+4}")
    i(f"v_lshlrev_b32 v{P+2}, 16, v{P+5}")
    H = P + 4
    for jj in range(3):
        i(f"v_mul_f32 v{H+jj}, v{P}, v{V_WD+jj}")
    for ii in (1, 2):
        for jj in range(3):
            i(f"v_fmac_f32 v{H+jj}, v{P+ii}, v{V_WD+3*ii+jj}")
    for dpp in ("quad_perm:[1,0,3,2]", "quad_perm:[2,3,0,1]", "row_half_mirror", "row_mirror"):
        for jj in range(3):
            i(f"v_add_f32_dpp v{H+jj}, v{H+jj}, v{H+jj} {dpp} row_mask:0xf bank_mask:0xf")
    for jj in range(3):
        i(f"v_add_f32_dpp v{H+jj}, v{H+jj}, v{H+jj} row_bcast:15 row_mask:0xa bank_mask:0xf")
    i(f"v_cndmask_b32 v{H}, v{H}, v{H+1}, s[4:5]")
    i(f"v_cndmask_b32 v{H}, v{H}, v{H+2}, s[14:15]")
    i(f"v_cvt_pk_bf16_f32 v{H}, v{H}, v{H}")
    i(f"v_lshlrev_b32 v{H}, 16, v{H}", "h (bf16)")
    i(f"v_mul_f32 v{P}, 0xbfb8aa3b, v{H}")
    i(f"v_exp_f32 v{P}, v{P}")
    i("s_nop 0")
    i(f"v_add_f32 v{P}, 1.0, v{P}")
    i(f"v_rcp_f32 v{P}, v{P}")
    i("s_nop 0")
    i(f"v_mul_f32 v{H}, v{H}, v{P}")
    i(f"v_cvt_pk_bf16_f32 v{H}, v{H}, v{H}")
    i(f"v_lshlrev_b32 v{H}, 16, v{H}", "silu(h) (bf16)")
    i("s_mov_b32 s42, 0xbfb8aa3b")
    for j in range(6):
        i(f"v_readlane_b32 s{8+j}, v{H}, {16 + (j % 3) + 32*(j//3)}")
    Z = P
    sel = lambda j: "op_sel:[0,1,0] op_sel_hi:[1,1,1]" if j & 1 else "op_sel:[0,0,0] op_sel_hi:[1,0,1]"
    i(f"v_pk_mul_f32 v[{Z}:{Z+1}], v[{V_WU}:{V_WU+1}], s[8:9] op_sel:[0,0] op_sel_hi:[1,0]")
    for j in range(1, 6):
        sp = 8 + (j & ~1)
        i(f"v_pk_fma_f32 v[{Z}:{Z+1}], v[{V_WU+2*j}:{V_WU+2*j+1}], s[{sp}:{sp+1}], v[{Z}:{Z+1}] {sel(j)}")
    i(f"v_cvt_pk_bf16_f32 v{Z+2}, v{Z}, v{Z+1}")
    i(f"v_lshlrev_b32 v{Z}, 16, v{Z+2}")
    i(f"v_and_b32 v{Z+1}, 0xffff0000, v{Z+2}")
    i(f"v_pk_mul_f32 v[{Z}:{Z+1}], v[{Z}:{Z+1}], s[42:43] op_sel:[0,0] op_sel_hi:[1,0]")
    i(f"v_exp_f32 v{Z}, v{Z}")
    i(f"v_exp_f32 v{Z+1}, v{Z+1}")
    i("s_nop 0")
    i(f"v_pk_add_f32 v[{Z}:{Z+1}], v[{Z}:{Z+1}], 1.0 op_sel_hi:[1,0]")
    i(f"v_rcp_f32 v{Z}, v{Z}")
    i(f"v_rcp_f32 v{Z+1}, v{Z+1}")
    i("s_nop 0")
    i(f"v_cvt_pk_bf16_f32 v{Z+2}, v{Z}, v{Z+1}", "sigmoid (bf16)")
    i(f"v_lshlrev_b32 v{Z}, 16, v{Z+2}")
    i(f"v_and_b32 v{Z+1}, 0xffff0000, v{Z+2}")
    i(f"ds_write2st64_b32 v{V_L4}, v{Z}, v{Z+1} offset0:{LDS_SCALE//256} offset1:{LDS_SCALE//256+1}")
    i("s_waitcnt lgkmcnt(0)")
    a("L_wait2:")
    i("s_barrier")
    i(f"ds_read_b128 v[{V_SC}:{V_SC+3}], v{V_SCA}")
    i(f"ds_read_b128 v[{V_SC+4}:{V_SC+7}], v{V_SCA} offset:16")
    i("s_mov_b64 exec, s[44:45]")
    i("s_mov_b32 s40, s41")
    stamp(6)
    i("s_mov_b32 s43, 0xffff0000")
    for k in range(L):
        d = V_DATA + 4 * k
        for r in range(4):
            i(f"v_lshlrev_b32 v{T+2*r}, 16, v{d+r}")
            i(f"v_and_b32 v{T+2*r+1}, s43, v{d+r}")
        if k == 0:
            i("s_waitcnt lgkmcnt(0)")
        for r in range(4):
            i(f"v_pk_mul_f32 v[{T+2*r}:{T+2*r+1}], v[{T+2*r}:{T+2*r+1}], v[{V_SC+2*r}:{V_SC+2*r+1}]")
        for r in range(4):
            i(f"v_cvt_pk_bf16_f32 v{d+r}, v{T+2*r}, v{T+2*r+1}")
        mem("buffer_store_dwordx4", k, f"v[{d}:{d+3}]", "s[20:23]", stf2 if k < o.nst2 or k >= L - o.nst2e else stf)
    if o.stamps:
        stamp(7)
        i("s_waitcnt vmcnt(0)")
        stamp(8)
        i("s_memtime s[90:91]")
        i("s_mov_b64 exec, -1")
        i("s_getreg_b32 s42, hwreg(HW_REG_HW_ID)")
        i("s_getreg_b32 s43, hwreg(HW_REG_XCC_ID)")
        i("s_waitcnt lgkmcnt(0)")
        i(f"v_mov_b32 v{V_ZA}, 0")
        for k in range(nstamp[0]):
            i(f"v_writelane_b32 v{V_ZA}, s{60+2*k}, {k}")
        i(f"v_writelane_b32 v{V_ZA}, s78, 9")
        i("s_sub_u32 s90, s90, s88")
        i(f"v_writelane_b32 v{V_ZA}, s90, 11")
        i("s_sub_u32 s50, 0x200000, s50")
        i(f"v_writelane_b32 v{V_ZA}, s50, 12")
        i(f"v_writelane_b32 v{V_ZA}, s42, 14")
        i(f"v_writelane_b32 v{V_ZA}, s43, 15")
        i("s_lshl_b32 s42, s2, 4")
        i("s_add_u32 s42, s42, s3")
        i("s_lshl_b32 s42, s42, 6")
        i("s_add_u32 s42, s42, 0x4000000")
        i("s_mov_b64 exec, 0xffff")
        i(f"buffer_store_dword v{V_ZA}, v{V_L4}, s[24:27], s42 offen")
        if o.probe:
            pa, pb, pk, pw = [int(x) for x in o.probe.split(",")]
            i("s_cmp_lg_u32 s3, 0")
            i("s_cbranch_scc1 L_end")
            i(f"s_cmp_lg_u32 s2, {pw}")
            i("s_cbranch_scc1 L_end")
            i(f"s_sub_u32 s42, s{60+2*pb}, s{60+2*pa}")
            i(f"s_mul_i32 s42, s42, {pk}")
            i("s_add_u32 s42, s42, 4000")
            i("s_min_u32 s42, s42, 20000")
            a("L_probe:")
            i("s_memrealtime s[50:51]")
            i("s_waitcnt lgkmcnt(0)")
            i("s_sub_u32 s43, s50, s60")
            i("s_cmp_lt_u32 s43, s42")
            i("s_cbranch_scc1 L_probe")
    if o.iodprobe:
        i("s_or_b32 s42, s2, s3")
        i("s_cmp_lg_u32 s42, 0")
        i("s_cbranch_scc1 L_end")
        i("s_waitcnt vmcnt(0)")
        for _ in range(6):
            i("s_sleep 127")
        i("s_getreg_b32 s70, hwreg(HW_REG_XCC_ID)")
        i("s_and_b32 s70, s70, 15")
        i("s_mov_b64 exec, -1")
        i(f"v_mov_b32 v{V_ZA}, 0")
        i(f"v_writelane_b32 v{V_ZA}, s70, 0")
        for bi, (base, npg) in enumerate(((16, 25), (20, 25), (24, 32), (28, 1))):
            i(f"s_mov_b32 s60, s{base}")
            i(f"s_mov_b32 s61, s{base+1}")
            i("s_mov_b32 s71, 0")
            i("s_mov_b32 s72, 0")
            a(f"L_pg{bi}:")
            for h in range(2):
                i(f"s_mov_b32 s{73+h}, -1")
                for r in range(4):
                    i("s_memtime s[62:63]")
                    i("s_waitcnt lgkmcnt(0)")
                    off = 8192 * h if bi != 3 else 0
                    if bi == 3 and h == 1:
                        i("s_load_dword s66, s[24:25], 0 glc")
                    else:
                        i(f"s_load_dword s66, s[60:61], {off} glc")
                    i("s_waitcnt lgkmcnt(0)")
                    i("s_memtime s[64:65]")
                    i("s_waitcnt lgkmcnt(0)")
                    i("s_sub_u32 s64, s64, s62")
                    i(f"s_min_u32 s{73+h}, s{73+h}, s64")
            i("s_cmp_lt_u32 s73, s74")
            i("s_cselect_b32 s75, 0, 1")
            i("s_lshl_b32 s75, s75, s71")
            i("s_or_b32 s72, s72, s75")
            i("s_add_u32 s60, s60, 0x200000")
            i("s_addc_u32 s61, s61, 0")
            i("s_add_u32 s71, s71, 1")
            i(f"s_cmp_lt_u32 s71, {npg}")
            i(f"s_cbranch_scc1 L_pg{bi}")
            i(f"v_writelane_b32 v{V_ZA}, s72, {1+bi}")
            i(f"v_writelane_b32 v{V_ZA}, s{base}, {5+bi}")
        i(f"v_writelane_b32 v{V_ZA}, s73, 9")
        i(f"v_writelane_b32 v{V_ZA}, s74, 10")
        i("s_mov_b64 exec, 0x7ff")
        i(f"buffer_store_dword v{V_ZA}, v{V_L4}, s[28:31], 0 offen offset:4")
    a("L_end:")
    i("s_endpgm")
    a("L_flagspin:")
    a.c("rare: the zeroing-done flag was not up yet when this wave read it")
    i(f"buffer_load_dword v{V_FLAG}, off, s[28:31], 0 sc1")
    i("s_waitcnt vmcnt(0)")
    i(f"v_readfirstlane_b32 s43, v{V_FLAG}")
    i("s_sub_u32 s50, s50, 1")
    i("s_cbranch_scc1 L_flagok")
    i("s_cmp_eq_u32 s43, 0")
    i("s_cbranch_scc1 L_flagspin")
    i("s_branch L_flagok")
    a("L_zero:")
    a.c("WG 0, wave 0: zero the replica accumulators and the published area, then raise the flag in d_debug")
    i("s_mov_b64 exec, -1")
    i(f"v_lshrrev_b32 v{T}, 2, v{V_LANE}")
    i(f"v_mul_u32_u24 v{T}, {LS}, v{T}")
    i(f"v_and_b32 v{T+1}, 3, v{V_LANE}")
    i(f"v_lshl_add_u32 v{V_ZA}, v{T+1}, 4, v{T}")
    for r in range(4):
        i(f"v_mov_b32 v{P+r}, 0")
    i("s_mov_b32 s43, 0")
    for k in range(NP):
        i(f"buffer_store_dwordx4 v[{P}:{P+3}], v{V_ZA}, s[24:27], s43 offen sc1")
        i(f"s_add_u32 s43, s43, {16*LS}")
    for c in range(G):
        for k in range(NP):
            i(f"s_mov_b32 s43, {FIN + c*CS + 16*PS*k}")
            i(f"buffer_store_dwordx4 v[{P}:{P+3}], v{V_POLL}, s[24:27], s43 offen sc1")
    i(f"v_mov_b32 v{T+4}, 1")
    i("s_waitcnt vmcnt(0)")
    i("s_mov_b64 exec, 1")
    i(f"buffer_store_dword v{T+4}, off, s[28:31], 0 sc1")
    i("s_mov_b64 exec, s[44:45]")
    i("s_branch L_loads")
    a(f""".section .rodata,"a"
.p2align 6
.amdhsa_kernel {KNAME}
  .amdhsa_next_free_vgpr {NV}
  .amdhsa_next_free_sgpr 100
  .amdhsa_accum_offset {ACC}
  .amdhsa_group_segment_fixed_size 0
  .amdhsa_kernarg_size 48
  .amdhsa_user_sgpr_count 2
  .amdhsa_user_sgpr_kernarg_segment_ptr 1
  .amdhsa_system_sgpr_workgroup_id_x 1
  .amdhsa_float_denorm_mode_32 3
.end_amdhsa_kernel""")
    return a.text()


def main():
    ap = argparse.ArgumentParser()
    ap.add_argument("-o", default="-")
    ap.add_argument("--xcdswz", type=int, default=2)
    ap.add_argument("--R", type=int, default=4)
    ap.add_argument("--K", type=int, default=3)
    ap.add_argument("--LS", type=int, default=256)
    ap.add_argument("--lds", type=int, default=0)
    ap.add_argument("--bar0", type=int, default=3)
    ap.add_argument("--slots", type=int, default=1)
    ap.add_argument("--latebar", type=int, default=1)
    ap.add_argument("--PS", type=int, default=64)
    ap.add_argument("--pollsleep", type=int, default=0)
    ap.add_argument("--G", type=int, default=0)
    ap.add_argument("--cpad", type=int, default=0)
    ap.add_argument("--numa", type=int, default=0)
    ap.add_argument("--iodprobe", type=int, default=0)
    ap.add_argument("--touch", type=int, default=0)
    ap.add_argument("--ldflags", default="nt")
    ap.add_argument("--stflags", default="nt")
    ap.add_argument("--stflags2", default="nt+sc1")
    ap.add_argument("--nst2", type=int, default=4)
    ap.add_argument("--nst2e", type=int, default=0)
    ap.add_argument("--stamps", type=int, default=0)
    ap.add_argument("--probe", default="")
    ap.add_argument("--x9", default="")
    o = ap.parse_args()
    t = gen(o)
    if o.o == "-":
        sys.stdout.write(t)
    else:
        open(o.o, "w").write(t)


if __name__ == "__main__":
    main()
```

```python
import argparse
import struct
import sys

XBYTES = 512 * 512 * 96 * 2
NWG = 256
KNAME = "standalone__se_block__vision_kernel"

HEADER = """; Kernarg layout for this problem (48 bytes, ptrs only, base s[0:1]):
"""


def f2u(x):
    return struct.unpack("<I", struct.pack("<f", x))[0]


class Asm:
    def __init__(self):
        self.l = []

    def __call__(self, s):
        for line in s.strip("\n").split("\n"):
            self.l.append(line)

    def i(self, s, c=None):
        self.l.append("    " + s + (f"    ; {c}" if c else ""))

    def c(self, s):
        self.l.append("    ; " + s)

    def text(self):
        return "\n".join(self.l) + "\n"


def gen(o):
    W = 8
    L = 256 // W
    UNIT = 768
    R = o.R
    LS = o.LS
    K = o.K
    NP = R // 2
    a = Asm()
    i = a.i
    LDS_ACC = 0
    LDS_SCALE = 512
    LDS_CNT = 1024
    LDS_SLOT = 1280
    lds = max(1056 if not o.slots else LDS_SLOT + W * 512, o.lds)
    FIN = R * 8 * LS
    a(HEADER)
    a(f"; @launch grid=({NWG},1,1) block=({W*64},1,1) lds={lds}")
    a(f""".amdgcn_target "amdgcn-amd-amdhsa--gfx950"
.text
.globl {KNAME}
.p2align 8
.type {KNAME},@function
{KNAME}:""")

    V_OFF = 1
    V_A = 2
    V_D = 6
    V_LANE = 10
    V_POLL = 11
    V_ATOM = 12
    V_FLAG = 13
    V_L4 = 14
    V_SCA = 15
    V_WRA = 16
    V_T = 20
    V_PUB = 28
    V_ZA = 29
    V_ONE = 30
    V_TRA = 19
    V_WD = 31
    V_WU = 40
    V_SC = 52
    V_PS = 60
    V_DATA = V_PS + max(16, 4 * NP * K)
    NV = V_DATA + 4 * L
    ACC = (NV + 3) // 4 * 4
    dreg = lambda k: f"v[{V_DATA+4*k}:{V_DATA+4*k+3}]"
    assert NV <= 256, NV
    T = V_T
    P = V_SC

    nstamp = [0]

    def stamp(k=None):
        if not o.stamps:
            return
        if k is None:
            k = nstamp[0]
            nstamp[0] += 1
        else:
            nstamp[0] = max(nstamp[0], k + 1)
        i(f"s_memrealtime s[{60+2*k}:{61+2*k}]")

    def x9(tag):
        if o.x9 == tag:
            i("s_memrealtime s[78:79]")

    ldf = o.ldflags.replace("+", " ")
    stf = o.stflags.replace("+", " ")
    stf2 = o.stflags2.replace("+", " ")
    wg_stride, wave_stride, u_stride = W * UNIT, UNIT, NWG * W * UNIT

    numa = o.numa

    def numa_group(g):
        i("s_lshr_b32 s42, s40, 21")
        if numa == 5:
            i("s_lshr_b32 s91, s86, s42")
            i("s_bitcmp1_b32 s87, s42")
            i("s_cselect_b32 s42, s90, s91")
            if g & 1:
                i("s_cselect_b32 s91, 1, 0")
                i("s_xor_b32 s42, s42, s91")
        elif numa >= 3:
            i("s_lshr_b32 s42, s86, s42")
        i("s_xor_b32 s42, s42, s47")
        i("s_bitcmp1_b32 s42, 0")
        for c in range(4):
            i(f"s_cselect_b32 s{80+c}, s{96+c}, s{92+c}")

    def mem(op, k, reg, srd, flags):
        if numa:
            c = k % 4
            if c == 0:
                numa_group(k // 4)
            i(f"s_add_u32 s46, s40, s{80+c}")
            i(f"{op} {reg}, v{V_OFF}, {srd}, s46 offen {flags}".rstrip())
            if c == 3 and k != L - 1:
                i(f"s_add_u32 s40, s40, {128 * 49152}")
            return
        i(f"{op} {reg}, v{V_OFF}, {srd}, s40 offen {flags}".rstrip())
        if k != L - 1:
            i(f"s_add_u32 s40, s40, {u_stride}")

    stamp(0)
    if o.stamps:
        i("s_memtime s[88:89]")
    i("s_load_dwordx2 s[16:17], s[0:1], 0", "x")
    i("s_load_dwordx2 s[32:33], s[0:1], 8", "w_down")
    i("s_load_dwordx2 s[36:37], s[0:1], 16", "w_up")
    i("s_load_dwordx2 s[20:21], s[0:1], 24", "out")
    i("s_load_dwordx2 s[28:29], s[0:1], 32", "debug")
    i("s_load_dwordx2 s[24:25], s[0:1], 40", "ws")
    i(f"s_cmp_ge_u32 s2, {NWG}")
    i("s_cbranch_scc1 L_end")
    i(f"v_lshrrev_b32 v{T}, 6, v0")
    i(f"v_and_b32 v{V_LANE}, 63, v0")
    i(f"v_readfirstlane_b32 s3, v{T}", "wave id")
    i(f"v_and_b32 v{T+1}, 15, v0", "n = 16-byte chunk of the pixel (12 used)")
    i(f"v_bfe_u32 v{T+2}, v0, 4, 2", "q = pixel of the 4")
    i(f"v_mul_u32_u24 v{V_OFF}, 192, v{T+2}")
    i(f"v_lshl_add_u32 v{V_OFF}, v{T+1}, 4, v{V_OFF}")
    if numa:
        a.c("WG (h = bit 2 of the id, rank i): 48 KiB period g*128 + i, the 32 units that lie on the memory side of group h")
        i("s_lshr_b32 s42, s2, 3")
        i("s_lshl_b32 s42, s42, 2")
        i("s_and_b32 s43, s2, 3")
        i("s_or_b32 s42, s42, s43")
        i("s_mul_i32 s41, s42, 49152")
        i("s_bfe_u32 s47, s2, 0x10002")
        if numa == 2:
            i("s_xor_b32 s47, s47, 1")
        for c in range(4):
            i(f"s_add_u32 s42, s3, {8*c}", "y")
            i("s_cmp_ge_u32 s42, 11")
            i("s_cselect_b32 s43, 10, 0")
            i("s_cmp_ge_u32 s42, 22")
            i("s_cselect_b32 s43, 21, s43")
            i("s_add_u32 s43, s43, s42")
            i(f"s_mul_i32 s{92+c}, s43, 768")
            i("s_cmp_ge_u32 s42, 10")
            i("s_cselect_b32 s43, 22, 11")
            i("s_cmp_ge_u32 s42, 21")
            i("s_cselect_b32 s43, 32, s43")
            i("s_add_u32 s43, s43, s42")
            i(f"s_mul_i32 s{96+c}, s43, 768")
    elif o.xcdswz >= 2:
        g = o.xcdswz.bit_length() - 1
        a.c("groups of WGs with equal id mod 8 get neighbouring addresses (speed only)")
        i("s_and_b32 s42, s2, 7")
        i(f"s_lshl_b32 s42, s42, {g}")
        i(f"s_bfe_u32 s43, s2, {3 | (g << 16)}")
        i("s_or_b32 s42, s42, s43")
        i(f"s_andn2_b32 s43, s2, {(8 << g) - 1}")
        i("s_or_b32 s42, s42, s43")
        i(f"s_mul_i32 s41, s42, {wg_stride}")
    else:
        i(f"s_mul_i32 s41, s2, {wg_stride}")
    if not numa:
        i(f"s_mul_i32 s42, s3, {wave_stride}")
        i("s_add_u32 s41, s41, s42")
    i("s_mov_b32 s40, s41")
    i(f"s_mov_b32 s18, {XBYTES}")
    i("s_mov_b32 s19, 0x00020000")
    i(f"s_mov_b32 s22, {XBYTES}")
    i("s_mov_b32 s23, 0x00020000")
    i("s_mov_b32 s26, 0x10000000")
    i("s_mov_b32 s27, 0x00020000")
    i("s_mov_b32 s30, 256")
    i("s_mov_b32 s31, 0x00020000")
    i("s_mov_b32 s34, 1152")
    i("s_mov_b32 s35, 0x00020000")
    i("s_mov_b32 s38, 1152")
    i("s_mov_b32 s39, 0x00020000")
    i("s_mov_b32 s44, 0x0fff0fff")
    i("s_mov_b32 s45, 0x0fff0fff")
    PS = o.PS
    i(f"v_and_b32 v{T+3}, 3, v{V_LANE}")
    i(f"v_lshrrev_b32 v{T+4}, 2, v{V_LANE}")
    i(f"v_mul_u32_u24 v{T+4}, {PS}, v{T+4}")
    i(f"v_lshl_add_u32 v{V_POLL}, v{T+3}, 4, v{T+4}", "poll address: (l>>2)*PS + (l&3)*16")
    i(f"v_lshlrev_b32 v{V_L4}, 2, v{V_LANE}")
    a.c("LDS init: channel sums 0, count words 1.0, arrival counter 0 (every wave writes the same words)")
    i("s_mov_b32 s6, 0x88888888")
    i("s_mov_b32 s7, 0x88888888")
    i(f"v_cndmask_b32 v{T+3}, 0, 1.0, s[6:7]")
    i(f"v_mov_b32 v{T+4}, 0")
    i(f"ds_write2st64_b32 v{V_L4}, v{T+3}, v{T+3} offset0:0 offset1:1")
    i(f"ds_write_b32 v{T+4}, v{T+4} offset:{LDS_CNT}")
    i("s_or_b32 s43, s2, s3")
    i("s_mov_b64 exec, s[44:45]")
    i("s_waitcnt lgkmcnt(0)")
    if o.diag:
        a.c("DIAGNOSTIC ONLY: slow set-up, then a fixed start time")
        i("s_memrealtime s[60:61]")
        i("s_waitcnt lgkmcnt(0)")
        i("s_getreg_b32 s70, hwreg(HW_REG_XCC_ID)")
        i("s_and_b32 s70, s70, 15")
        i("s_lshr_b32 s47, s70, 2")
        i("s_mov_b64 exec, 1")
        i("s_cmp_lg_u32 s3, 0")
        i("s_cbranch_scc1 L_dg_wait")
        a.c("rank within the IOD group")
        i("s_lshl_b32 s42, s47, 4")
        i("s_lshl_b32 s42, 1, s42")
        i(f"v_mov_b32 v{T}, s42")
        i(f"buffer_atomic_add v{T}, off, s[28:31], 0 offset:64 sc0")
        i("s_waitcnt vmcnt(0)")
        i(f"v_readfirstlane_b32 s42, v{T}")
        i("s_lshl_b32 s62, s47, 4")
        i("s_lshr_b32 s42, s42, s62")
        i("s_and_b32 s42, s42, 0xffff")
        i("s_cmp_ge_u32 s42, 128")
        i("s_cselect_b32 s62, 1, 0")
        i("s_xor_b32 s63, s47, s62")
        i("s_sub_u32 s64, 255, s42")
        i("s_cmp_ge_u32 s42, 128")
        i("s_cselect_b32 s42, s64, s42")
        i("s_lshl_b32 s63, s63, 8")
        i("s_or_b32 s42, s42, s63")
        i("s_add_u32 s42, s42, 0x10000")
        i(f"v_mov_b32 v{T}, s42")
        i(f"v_mov_b32 v{T+1}, 1040")
        i(f"ds_write_b32 v{T+1}, v{T}")
        i("s_cmp_lg_u32 s2, 0")
        i("s_cbranch_scc1 L_dg_wait")
        for bi, base in enumerate((16, 20)):
            i(f"s_mov_b32 s68, s{base}")
            i(f"s_mov_b32 s69, s{base+1}")
            i("s_mov_b32 s71, 0")
            i(f"s_mov_b32 s{76+bi}, 0")
            a(f"L_dpg{bi}:")
            for h in range(2):
                i(f"s_mov_b32 s{73+h}, -1")
                for r in range(3):
                    i("s_memtime s[62:63]")
                    i("s_waitcnt lgkmcnt(0)")
                    i(f"s_load_dword s66, s[68:69], {8192*h} glc")
                    i("s_waitcnt lgkmcnt(0)")
                    i("s_memtime s[64:65]")
                    i("s_waitcnt lgkmcnt(0)")
                    i("s_sub_u32 s64, s64, s62")
                    i(f"s_min_u32 s{73+h}, s{73+h}, s64")
            i("s_cmp_lt_u32 s73, s74")
            i("s_cselect_b32 s75, 0, 1")
            i("s_xor_b32 s75, s75, s47")
            i("s_lshl_b32 s75, s75, s71")
            i(f"s_or_b32 s{76+bi}, s{76+bi}, s75")
            i("s_add_u32 s68, s68, 0x200000")
            i("s_addc_u32 s69, s69, 0")
            i("s_add_u32 s71, s71, 1")
            i("s_cmp_lt_u32 s71, 24")
            i(f"s_cbranch_scc1 L_dpg{bi}")
        i("s_add_u32 s60, s60, 15000")
        i("s_or_b32 s60, s60, 1")
        i(f"v_mov_b32 v{T}, s76")
        i(f"v_mov_b32 v{T+1}, s77")
        i(f"v_mov_b32 v{T+2}, s60")
        i(f"v_mov_b32 v{T+3}, s70")
        i(f"buffer_store_dwordx4 v[{T}:{T+3}], off, s[28:31], 0 offset:16 sc1")
        a("L_dg_wait:")
        i("s_mov_b32 s62, 0x40000")
        a("L_dg_poll:")
        i("s_sleep 64")
        i(f"buffer_load_dwordx4 v[{T}:{T+3}], off, s[28:31], 0 offset:16 sc1")
        i("s_waitcnt vmcnt(0) lgkmcnt(0)")
        i(f"v_readfirstlane_b32 s60, v{T+2}")
        i("s_sub_u32 s62, s62, 1")
        i("s_cbranch_scc1 L_dg_got")
        i("s_cmp_eq_u32 s60, 0")
        i("s_cbranch_scc1 L_dg_poll")
        a("L_dg_got:")
        i(f"v_readfirstlane_b32 s86, v{T+1}")
        i(f"v_readfirstlane_b32 s87, v{T}")
        i("s_barrier")
        i(f"v_mov_b32 v{T+1}, 1040")
        i(f"ds_read_b32 v{T}, v{T+1}")
        i("s_waitcnt lgkmcnt(0)")
        i(f"v_readfirstlane_b32 s42, v{T}")
        i("s_xor_b32 s87, s87, s86", "pages where x and out differ")
        if numa:
            i("s_bfe_u32 s47, s42, 0x10008")
            i("s_and_b32 s42, s42, 127")
            i("s_mul_i32 s41, s42, 49152")
            i("s_mov_b32 s40, s41")
            i("s_mov_b32 s90, s42")
        i("s_mov_b32 s62, 0x400000")
        a("L_dg_spin:")
        i("s_memrealtime s[64:65]")
        i("s_waitcnt lgkmcnt(0)")
        i("s_sub_u32 s62, s62, 1")
        i("s_cbranch_scc1 L_dg_go")
        i("s_sub_u32 s64, s64, s60")
        i("s_cmp_lt_i32 s64, 0")
        i("s_cbranch_scc1 L_dg_spin")
        a("L_dg_go:")
        i("s_mov_b64 exec, s[44:45]")
    if numa in (3, 4) and not o.diag:
        i("s_add_u32 s86, s24, 0x5000000")
        i("s_addc_u32 s87, s25, 0")
        i(f"s_load_dword s86, s[86:87], {4 * (numa - 3)}")
        i("s_waitcnt lgkmcnt(0)")
    stamp(1)
    for k in range(L):
        mem("buffer_load_dwordx4", k, dreg(k), "s[16:19]", ldf)
        if k == o.bar0:
            i("s_barrier", "LDS init done in every wave")
            i("s_cmp_eq_u32 s43, 0")
            i("s_cbranch_scc1 L_zero")
            a("L_loads:")
    i("s_mov_b64 exec, 1")
    i(f"buffer_load_dword v{V_FLAG}, off, s[28:31], 0 sc1", "zeroing-done flag")
    NX = 1
    if o.touch:
        i(f"s_mov_b32 s42, {o.touch}")
        i(f"buffer_load_dword v{V_ZA}, off, s[24:27], s42", "translation warm-up for the d_ws page")
        NX = 2
    i("s_mov_b64 exec, -1")
    stamp(2)
    i(f"v_and_b32 v{T}, 15, v{V_LANE}", "A[i][k] = 1 where k%8 == i (i<8): sums the 4 pixels per channel")
    i(f"v_and_b32 v{T+1}, 1, v{V_LANE}")
    i(f"v_lshlrev_b32 v{T+1}, 4, v{T+1}")
    i(f"v_mov_b32 v{T+2}, 0x3f80")
    i(f"v_lshlrev_b32 v{T+1}, v{T+1}, v{T+2}")
    i(f"v_lshrrev_b32 v{T+2}, 1, v{T}")
    for r in range(4):
        i(f"v_cmp_eq_u32 vcc, {r}, v{T+2}")
        i(f"v_mov_b32 v{V_D+r}, 0")
        i("s_nop 0")
        i(f"v_cndmask_b32 v{V_A+r}, 0, v{T+1}, vcc")
    a.c("LDS add addresses: ch = 8n + 4u + r, word = ch + ch/3")
    i(f"v_bfe_u32 v{T+3}, v{V_LANE}, 4, 1")
    i(f"v_lshlrev_b32 v{T+3}, 2, v{T+3}")
    i(f"v_lshl_add_u32 v{T+3}, v{T}, 3, v{T+3}")
    if o.slots:
        a.c("slot write address: LDS_SLOT + wave*512 + (n/6)*256 + (n%6)*32 + (u&1)*16; read address (3*(l>>2) + (l&3))*4")
        i(f"v_bfe_u32 v{T+3}, v{V_LANE}, 4, 1")
        i(f"v_lshlrev_b32 v{T+3}, 4, v{T+3}")
        i("s_lshl_b32 s42, s3, 9")
        i(f"s_add_u32 s42, s42, {LDS_SLOT}")
        i(f"v_add_u32 v{T+3}, s42, v{T+3}")
        i(f"v_mul_u32_u24 v{T+5}, 43, v{T}")
        i(f"v_lshrrev_b32 v{T+5}, 8, v{T+5}")
        i(f"v_mul_u32_u24 v{T+6}, 6, v{T+5}")
        i(f"v_sub_u32 v{T+6}, v{T}, v{T+6}")
        i(f"v_lshl_add_u32 v{V_WRA}, v{T+5}, 8, v{T+3}")
        i(f"v_lshl_add_u32 v{V_WRA}, v{T+6}, 5, v{V_WRA}")
        i(f"v_lshrrev_b32 v{T+4}, 2, v{V_LANE}")
        i(f"v_and_b32 v{T+5}, 3, v{V_LANE}")
        i(f"v_mul_u32_u24 v{V_WRA+1}, 3, v{T+4}")
        i(f"v_add_lshl_u32 v{V_WRA+1}, v{V_WRA+1}, v{T+5}, 2")
        i("s_mov_b32 s84, 0x88888888")
        i("s_mov_b32 s85, 0x88888888")
    for r in range(4 if not o.slots else 0):
        i(f"v_add_u32 v{T+4}, {r}, v{T+3}")
        i(f"v_mul_u32_u24 v{T+5}, 43, v{T+4}")
        i(f"v_lshrrev_b32 v{T+5}, 7, v{T+5}")
        i(f"v_add_lshl_u32 v{V_WRA+r}, v{T+4}, v{T+5}, 2")
    i(f"v_lshlrev_b32 v{T+5}, 5, v{T}")
    i(f"v_add_u32 v{V_SCA}, {LDS_SCALE}, v{T+5}", "scale address: n*32")
    i(f"v_lshrrev_b32 v{T+4}, 2, v{V_LANE}")
    G = max(1, o.G)
    CS = R * 8 * PS + o.cpad
    if o.G:
        assert o.slots
        i(f"v_and_b32 v{T+4}, 3, v{T+4}", "copy")
        i(f"v_mul_u32_u24 v{V_PUB}, {CS}, v{T+4}")
        i(f"v_and_b32 v{T+5}, 3, v{V_LANE}")
        i(f"v_lshl_add_u32 v{V_PUB}, v{T+5}, 4, v{V_PUB}")
        i(f"v_lshrrev_b32 v{T+4}, 4, v{V_LANE}")
        i(f"v_lshlrev_b32 v{V_TRA}, 6, v{T+4}")
        i(f"v_lshl_add_u32 v{V_TRA}, v{T+5}, 4, v{V_TRA}", "transpose address: line*64 + granule*16")
    else:
        i(f"v_and_b32 v{T+4}, 3, v{T+4}")
        i(f"v_lshlrev_b32 v{V_PUB}, 4, v{T+4}")
        i(f"v_lshrrev_b32 v{T+4}, 4, v{V_LANE}")
    i(f"s_mov_b32 s42, {PS}")
    i(f"v_mad_u32_u24 v{V_PUB}, v{T+4}, s42, v{V_PUB}", "publish address: copy*CS + line*PS + granule*16")
    i(f"v_mul_u32_u24 v{T+4}, {LS}, v{T+4}")
    i(f"v_lshl_add_u32 v{V_ATOM}, v{T}, 2, v{T+4}", "atomic address: (l>>4)*LS + (l&15)*4")
    i(f"v_mov_b32 v{V_ONE}, 1")
    i(f"v_mov_b32 v{T+6}, {LDS_CNT}")
    i(f"s_and_b32 s56, s2, {R-1}", "replica")
    i(f"s_mul_i32 s48, s56, {8*LS}")
    i(f"s_add_u32 s49, s48, {4*LS}")
    i(f"s_mul_i32 s56, s56, {8*PS}")
    i(f"s_add_u32 s56, s56, {FIN}")
    i(f"s_add_u32 s57, s56, {4*PS}")
    if G == 8:
        i(f"s_add_u32 s58, s56, {4*CS}")
        i(f"s_add_u32 s59, s57, {4*CS}")
    i(f"s_mov_b32 s51, {f2u(float(NWG // R)):#x}")
    for k in range(NP):
        if k == 0:
            i(f"s_and_b32 s52, s2, {G-1}", "copy this WG polls")
            i(f"s_mul_i32 s52, s52, {CS}")
            i(f"s_add_u32 s52, s52, {FIN}")
        else:
            i(f"s_add_u32 s{52+k}, s52, {16*PS*k}")
    pm = {0: 0x11111111, 1: 0x000f000f, 2: 0x00ff00ff, 4: 0xffffffff, 8: 0xffffffff}[o.G]
    i(f"s_mov_b32 s6, {pm:#x}")
    i(f"s_mov_b32 s7, {pm:#x}")
    i("s_mov_b32 s4, 0x22222222")
    i("s_mov_b32 s5, 0x22222222")
    i("s_mov_b32 s14, 0x44444444")
    i("s_mov_b32 s15, 0x44444444")
    i("s_mov_b32 s50, 0x200000", "spin budget")
    a.c("wave 0 fetches the weights (its counted waits below only get stricter)")
    i("s_cmp_lg_u32 s3, 0")
    i("s_cbranch_scc1 L_now")
    for r in range(21):
        i(f"v_mov_b32 v{V_WD+r}, 0")
    i(f"v_and_b32 v{T}, 31, v{V_LANE}")
    i(f"v_lshrrev_b32 v{T+1}, 5, v{V_LANE}")
    i(f"v_mul_u32_u24 v{T+2}, 36, v{T}")
    i(f"v_mul_u32_u24 v{T+3}, 6, v{T+1}")
    i(f"v_add_u32 v{T+2}, v{T+2}, v{T+3}")
    i(f"v_lshlrev_b32 v{T+3}, 1, v{V_LANE}")
    for ii in range(3):
        for jj in range(3):
            i(f"buffer_load_short_d16_hi v{V_WD+3*ii+jj}, v{T+2}, s[32:35], 0 offen offset:{12*ii+2*jj}")
    for j in range(6):
        for h in range(2):
            i(f"buffer_load_short_d16_hi v{V_WU+2*j+h}, v{T+3}, s[36:39], 0 offen offset:{192*j+128*h}")
    a("L_now:")
    for k in range(L):
        i(f"s_waitcnt vmcnt({L-1-k+NX})")
        i(f"v_mfma_f32_16x16x32_bf16 v[{V_D}:{V_D+3}], v[{V_A}:{V_A+3}], {dreg(k)}, v[{V_D}:{V_D+3}]")
    stamp(3)
    if o.stamps:
        i("s_mov_b32 s68, 0")
        i("s_mov_b32 s78, 0")
    S0, S1 = T, T + 1
    i("s_mov_b32 exec_lo, 0x0fff0fff")
    i("s_mov_b32 exec_hi, 0")
    i("s_waitcnt vmcnt(0)")
    i(f"v_readfirstlane_b32 s43, v{V_FLAG}")
    i("s_nop 3")
    if o.slots:
        i(f"ds_write_b128 v{V_WRA}, v[{V_D}:{V_D+3}]")
    else:
        for r in range(4):
            i(f"ds_add_f32 v{V_WRA+r}, v{V_D+r}")
    i("s_mov_b64 exec, 1")
    i(f"ds_add_rtn_u32 v{T+7}, v{T+6}, v{V_ONE}")
    i("s_mov_b64 exec, -1")
    Q = V_PS
    if o.slots:
        for k in range(W):
            i(f"ds_read2st64_b32 v[{Q+2*k}:{Q+2*k+1}], v{V_WRA+1} offset0:{LDS_SLOT//256+2*k} offset1:{LDS_SLOT//256+2*k+1}")
    else:
        i(f"ds_read2st64_b32 v[{S0}:{S1}], v{V_L4} offset0:0 offset1:1")
    i("s_cmp_eq_u32 s43, 0")
    i("s_cbranch_scc1 L_flagspin")
    a("L_flagok:")
    i(f"s_waitcnt lgkmcnt({W if o.slots else 1})" if not o.stamps else "s_waitcnt lgkmcnt(0)")
    i(f"v_readfirstlane_b32 s42, v{T+7}")
    i(f"s_cmp_lg_u32 s42, {W-1}")
    i("s_cbranch_scc1 L_notlast")
    a.c("last wave of the WG: add the WG sums to this WG's replica; the old values tell who came last")
    if o.slots:
        step = 1
        while step < W:
            for k in range(0, W, 2 * step):
                if step == 1:
                    i(f"s_waitcnt lgkmcnt({W-2-k})")
                dst = T + 2 if step * 2 >= W else Q + 2 * k
                i(f"v_pk_add_f32 v[{dst}:{dst+1}], v[{Q+2*k}:{Q+2*k+1}], v[{Q+2*(k+step)}:{Q+2*(k+step)+1}]")
            step *= 2
        i(f"v_cndmask_b32 v{S0}, v{T+2}, 1.0, s[84:85]")
        i(f"v_cndmask_b32 v{S1}, v{T+3}, 1.0, s[84:85]")
    else:
        i("s_waitcnt lgkmcnt(0)")
    i(f"buffer_atomic_add_f32 v{S0}, v{V_ATOM}, s[24:27], s48 offen sc0")
    i(f"buffer_atomic_add_f32 v{S1}, v{V_ATOM}, s[24:27], s49 offen sc0")
    stamp(4)
    if o.slots:
        i(f"v_cndmask_b32 v{T+2}, v{T+2}, 1.0, s[84:85]")
        i(f"v_cndmask_b32 v{T+3}, v{T+3}, 1.0, s[84:85]")
    else:
        i(f"ds_read2st64_b32 v[{T+2}:{T+3}], v{V_L4} offset0:0 offset1:1")
    if not o.latebar:
        i("s_barrier")
    i("s_waitcnt vmcnt(1) lgkmcnt(0)")
    i(f"v_add_f32 v{T+2}, v{T+2}, v{S0}")
    i("s_waitcnt vmcnt(0)")
    i(f"v_add_f32 v{T+3}, v{T+3}, v{S1}")
    x9("atom")
    if o.G == 0:
        i(f"v_mov_b32_dpp v{P+3}, v{T+2} quad_perm:[3,3,3,3] row_mask:0xf bank_mask:0xf")
        i(f"v_mov_b32 v{P}, v{T+2}")
        i(f"v_mov_b32_dpp v{P+7}, v{T+3} quad_perm:[3,3,3,3] row_mask:0xf bank_mask:0xf")
        i(f"v_cmp_eq_f32 vcc, s51, v{P+3}")
        i(f"v_mov_b32_dpp v{P+1}, v{T+2} quad_perm:[1,1,1,1] row_mask:0xf bank_mask:0xf")
        i(f"v_cmp_eq_f32 s[42:43], s51, v{P+7}")
        i(f"v_mov_b32_dpp v{P+2}, v{T+2} quad_perm:[2,2,2,2] row_mask:0xf bank_mask:0xf")
        i(f"v_mov_b32 v{P+4}, v{T+3}")
        i(f"v_mov_b32_dpp v{P+5}, v{T+3} quad_perm:[1,1,1,1] row_mask:0xf bank_mask:0xf")
        i(f"v_mov_b32_dpp v{P+6}, v{T+3} quad_perm:[2,2,2,2] row_mask:0xf bank_mask:0xf")
        i("s_and_b64 exec, vcc, s[6:7]")
        i("s_cbranch_scc0 L_nopubA")
        i(f"buffer_store_dwordx4 v[{P}:{P+3}], v{V_PUB}, s[24:27], s56 offen sc1")
        a("L_nopubA:")
        i("s_and_b64 exec, s[42:43], s[6:7]")
        i("s_cbranch_scc0 L_nopubB")
        i(f"buffer_store_dwordx4 v[{P+4}:{P+7}], v{V_PUB}, s[24:27], s57 offen sc1")
    else:
        a.c("transpose through LDS: lane (line, copy, granule) gets one whole 16-byte granule")
        i(f"ds_write2st64_b32 v{V_L4}, v{T+2}, v{T+3} offset0:0 offset1:1")
        i(f"ds_read_b128 v[{P}:{P+3}], v{V_TRA}")
        i(f"ds_read_b128 v[{P+4}:{P+7}], v{V_TRA} offset:256")
        i("s_waitcnt lgkmcnt(1)" if not o.stamps else "s_waitcnt lgkmcnt(0)")
        i(f"v_cmp_eq_f32 vcc, s51, v{P+3}")
        i("s_waitcnt lgkmcnt(0)")
        i(f"v_cmp_eq_f32 s[42:43], s51, v{P+7}")
        i("s_and_b64 exec, vcc, s[6:7]")
        i("s_cbranch_scc0 L_nopubA")
        for j in range(max(1, o.G // 4)):
            i(f"buffer_store_dwordx4 v[{P}:{P+3}], v{V_PUB}, s[24:27], s{56+2*j} offen sc1")
        a("L_nopubA:")
        i("s_and_b64 exec, s[42:43], s[6:7]")
        i("s_cbranch_scc0 L_nopubB")
        for j in range(max(1, o.G // 4)):
            i(f"buffer_store_dwordx4 v[{P+4}:{P+7}], v{V_PUB}, s[24:27], s{57+2*j} offen sc1")
    a("L_nopubB:")
    i("s_mov_b64 exec, -1")
    if not o.latebar:
        i("s_branch L_role")
    a("L_notlast:")
    i("s_barrier")
    a("L_role:")
    i("s_cmp_lg_u32 s3, 0")
    i("s_cbranch_scc1 L_wait2")
    a.c("wave 0: poll the published replica sums")

    def issue(s):
        for k in range(NP):
            b = V_PS + 4 * (NP * s + k)
            i(f"buffer_load_dwordx4 v[{b}:{b+3}], v{V_POLL}, s[24:27], s{52+k} offen sc1")

    for s in range(K - 1):
        issue(s)
    i("s_mov_b32 s43, 0x36800000", "2^-18 folded into w_down")
    for r in range(9):
        i(f"v_mul_f32 v{V_WD+r}, s43, v{V_WD+r}")
    a("L_poll:")
    for s in range(K):
        if o.pollsleep:
            i(f"s_sleep {o.pollsleep}")
        issue((s + K - 1) % K)
        for k in range(NP):
            b = V_PS + 4 * (NP * s + k)
            i(f"s_waitcnt vmcnt({NP*K-1-k})")
            if k == 0:
                i(f"v_cmp_eq_f32 vcc, s51, v{b+3}")
            else:
                i(f"v_cmp_eq_f32 s[42:43], s51, v{b+3}")
                i("s_and_b64 vcc, vcc, s[42:43]")
        i("s_cmp_eq_u64 vcc, -1")
        i(f"s_cbranch_scc1 L_done{s}")
    i("s_sub_u32 s50, s50, 1")
    i("s_cbranch_scc0 L_poll")
    for s in range(K):
        a(f"L_done{s}:")
        b = V_PS + 4 * NP * s
        n = NP
        step = 1
        while step < n:
            for k in range(0, n, 2 * step):
                dst = P if step * 2 >= n else b + 4 * k
                i(f"v_pk_add_f32 v[{dst}:{dst+1}], v[{b+4*k}:{b+4*k+1}], v[{b+4*(k+step)}:{b+4*(k+step)+1}]")
                i(f"v_add_f32 v{dst+2}, v{b+4*k+2}, v{b+4*(k+step)+2}")
            step *= 2
        if n == 1:
            for r in range(3):
                i(f"v_mov_b32 v{P+r}, v{b+r}")
        if s != K - 1:
            i("s_branch L_mlp")
    a("L_mlp:")
    stamp(5)
    for r in range(3):
        i(f"v_mov_b32 v{P+4+r}, v{P+r}")
    i("s_nop 1" if not o.stamps else "s_nop 1")
    for r in range(3):
        i(f"v_permlane32_swap_b32 v{P+4+r}, v{P+r}")
    for r in range(3):
        i(f"v_add_f32 v{P+r}, v{P+r}, v{P+4+r}")
    i(f"v_cvt_pk_bf16_f32 v{P+4}, v{P}, v{P+1}", "channel sums rounded to bf16 (mean = sum * 2^-18)")
    i(f"v_cvt_pk_bf16_f32 v{P+5}, v{P+2}, v{P+2}")
    i(f"v_lshlrev_b32 v{P}, 16, v{P+4}")
    i(f"v_and_b32 v{P+1}, 0xffff0000, v{P+4}")
    i(f"v_lshlrev_b32 v{P+2}, 16, v{P+5}")
    H = P + 4
    for jj in range(3):
        i(f"v_mul_f32 v{H+jj}, v{P}, v{V_WD+jj}")
    for ii in (1, 2):
        for jj in range(3):
            i(f"v_fmac_f32 v{H+jj}, v{P+ii}, v{V_WD+3*ii+jj}")
    for dpp in ("quad_perm:[1,0,3,2]", "quad_perm:[2,3,0,1]", "row_half_mirror", "row_mirror"):
        for jj in range(3):
            i(f"v_add_f32_dpp v{H+jj}, v{H+jj}, v{H+jj} {dpp} row_mask:0xf bank_mask:0xf")
    for jj in range(3):
        i(f"v_add_f32_dpp v{H+jj}, v{H+jj}, v{H+jj} row_bcast:15 row_mask:0xa bank_mask:0xf")
    i(f"v_cndmask_b32 v{H}, v{H}, v{H+1}, s[4:5]")
    i(f"v_cndmask_b32 v{H}, v{H}, v{H+2}, s[14:15]")
    i(f"v_cvt_pk_bf16_f32 v{H}, v{H}, v{H}")
    i(f"v_lshlrev_b32 v{H}, 16, v{H}", "h (bf16)")
    i(f"v_mul_f32 v{P}, 0xbfb8aa3b, v{H}")
    i(f"v_exp_f32 v{P}, v{P}")
    i("s_nop 0")
    i(f"v_add_f32 v{P}, 1.0, v{P}")
    i(f"v_rcp_f32 v{P}, v{P}")
    i("s_nop 0")
    i(f"v_mul_f32 v{H}, v{H}, v{P}")
    i(f"v_cvt_pk_bf16_f32 v{H}, v{H}, v{H}")
    i(f"v_lshlrev_b32 v{H}, 16, v{H}", "silu(h) (bf16)")
    i("s_mov_b32 s42, 0xbfb8aa3b")
    for j in range(6):
        i(f"v_readlane_b32 s{8+j}, v{H}, {16 + (j % 3) + 32*(j//3)}")
    Z = P
    sel = lambda j: "op_sel:[0,1,0] op_sel_hi:[1,1,1]" if j & 1 else "op_sel:[0,0,0] op_sel_hi:[1,0,1]"
    i(f"v_pk_mul_f32 v[{Z}:{Z+1}], v[{V_WU}:{V_WU+1}], s[8:9] op_sel:[0,0] op_sel_hi:[1,0]")
    for j in range(1, 6):
        sp = 8 + (j & ~1)
        i(f"v_pk_fma_f32 v[{Z}:{Z+1}], v[{V_WU+2*j}:{V_WU+2*j+1}], s[{sp}:{sp+1}], v[{Z}:{Z+1}] {sel(j)}")
    i(f"v_cvt_pk_bf16_f32 v{Z+2}, v{Z}, v{Z+1}")
    i(f"v_lshlrev_b32 v{Z}, 16, v{Z+2}")
    i(f"v_and_b32 v{Z+1}, 0xffff0000, v{Z+2}")
    i(f"v_pk_mul_f32 v[{Z}:{Z+1}], v[{Z}:{Z+1}], s[42:43] op_sel:[0,0] op_sel_hi:[1,0]")
    i(f"v_exp_f32 v{Z}, v{Z}")
    i(f"v_exp_f32 v{Z+1}, v{Z+1}")
    i("s_nop 0")
    i(f"v_pk_add_f32 v[{Z}:{Z+1}], v[{Z}:{Z+1}], 1.0 op_sel_hi:[1,0]")
    i(f"v_rcp_f32 v{Z}, v{Z}")
    i(f"v_rcp_f32 v{Z+1}, v{Z+1}")
    i("s_nop 0")
    i(f"v_cvt_pk_bf16_f32 v{Z+2}, v{Z}, v{Z+1}", "sigmoid (bf16)")
    i(f"v_lshlrev_b32 v{Z}, 16, v{Z+2}")
    i(f"v_and_b32 v{Z+1}, 0xffff0000, v{Z+2}")
    i(f"ds_write2st64_b32 v{V_L4}, v{Z}, v{Z+1} offset0:{LDS_SCALE//256} offset1:{LDS_SCALE//256+1}")
    i("s_waitcnt lgkmcnt(0)")
    a("L_wait2:")
    i("s_barrier")
    i(f"ds_read_b128 v[{V_SC}:{V_SC+3}], v{V_SCA}")
    i(f"ds_read_b128 v[{V_SC+4}:{V_SC+7}], v{V_SCA} offset:16")
    i("s_mov_b64 exec, s[44:45]")
    i("s_mov_b32 s40, s41")
    stamp(6)
    i("s_mov_b32 s43, 0xffff0000")
    for k in range(L):
        d = V_DATA + 4 * k
        for r in range(4):
            i(f"v_lshlrev_b32 v{T+2*r}, 16, v{d+r}")
            i(f"v_and_b32 v{T+2*r+1}, s43, v{d+r}")
        if k == 0:
            i("s_waitcnt lgkmcnt(0)")
        for r in range(4):
            i(f"v_pk_mul_f32 v[{T+2*r}:{T+2*r+1}], v[{T+2*r}:{T+2*r+1}], v[{V_SC+2*r}:{V_SC+2*r+1}]")
        for r in range(4):
            i(f"v_cvt_pk_bf16_f32 v{d+r}, v{T+2*r}, v{T+2*r+1}")
        mem("buffer_store_dwordx4", k, f"v[{d}:{d+3}]", "s[20:23]", stf2 if k < o.nst2 or k >= L - o.nst2e else stf)
    if o.stamps:
        stamp(7)
        i("s_waitcnt vmcnt(0)")
        stamp(8)
        i("s_memtime s[90:91]")
        i("s_mov_b64 exec, -1")
        i("s_getreg_b32 s42, hwreg(HW_REG_HW_ID)")
        i("s_getreg_b32 s43, hwreg(HW_REG_XCC_ID)")
        i("s_waitcnt lgkmcnt(0)")
        i(f"v_mov_b32 v{V_ZA}, 0")
        for k in range(nstamp[0]):
            i(f"v_writelane_b32 v{V_ZA}, s{60+2*k}, {k}")
        i(f"v_writelane_b32 v{V_ZA}, s78, 9")
        i("s_sub_u32 s90, s90, s88")
        i(f"v_writelane_b32 v{V_ZA}, s90, 11")
        i("s_sub_u32 s50, 0x200000, s50")
        i(f"v_writelane_b32 v{V_ZA}, s50, 12")
        i(f"v_writelane_b32 v{V_ZA}, s42, 14")
        i(f"v_writelane_b32 v{V_ZA}, s43, 15")
        i("s_lshl_b32 s42, s2, 4")
        i("s_add_u32 s42, s42, s3")
        i("s_lshl_b32 s42, s42, 6")
        i("s_add_u32 s42, s42, 0x4000000")
        i("s_mov_b64 exec, 0xffff")
        i(f"buffer_store_dword v{V_ZA}, v{V_L4}, s[24:27], s42 offen")
        if o.probe:
            pa, pb, pk, pw = [int(x) for x in o.probe.split(",")]
            i("s_cmp_lg_u32 s3, 0")
            i("s_cbranch_scc1 L_end")
            i(f"s_cmp_lg_u32 s2, {pw}")
            i("s_cbranch_scc1 L_end")
            i(f"s_sub_u32 s42, s{60+2*pb}, s{60+2*pa}")
            i(f"s_mul_i32 s42, s42, {pk}")
            i("s_add_u32 s42, s42, 4000")
            i("s_min_u32 s42, s42, 20000")
            a("L_probe:")
            i("s_memrealtime s[50:51]")
            i("s_waitcnt lgkmcnt(0)")
            i("s_sub_u32 s43, s50, s60")
            i("s_cmp_lt_u32 s43, s42")
            i("s_cbranch_scc1 L_probe")
    if o.iodprobe:
        i("s_or_b32 s42, s2, s3")
        i("s_cmp_lg_u32 s42, 0")
        i("s_cbranch_scc1 L_end")
        i("s_waitcnt vmcnt(0)")
        for _ in range(6):
            i("s_sleep 127")
        i("s_getreg_b32 s70, hwreg(HW_REG_XCC_ID)")
        i("s_and_b32 s70, s70, 15")
        i("s_mov_b64 exec, -1")
        i(f"v_mov_b32 v{V_ZA}, 0")
        i(f"v_writelane_b32 v{V_ZA}, s70, 0")
        for bi, (base, npg) in enumerate(((16, 25), (20, 25), (24, 32), (28, 1))):
            i(f"s_mov_b32 s60, s{base}")
            i(f"s_mov_b32 s61, s{base+1}")
            i("s_mov_b32 s71, 0")
            i("s_mov_b32 s72, 0")
            a(f"L_pg{bi}:")
            for h in range(2):
                i(f"s_mov_b32 s{73+h}, -1")
                for r in range(4):
                    i("s_memtime s[62:63]")
                    i("s_waitcnt lgkmcnt(0)")
                    off = 8192 * h if bi != 3 else 0
                    if bi == 3 and h == 1:
                        i("s_load_dword s66, s[24:25], 0 glc")
                    else:
                        i(f"s_load_dword s66, s[60:61], {off} glc")
                    i("s_waitcnt lgkmcnt(0)")
                    i("s_memtime s[64:65]")
                    i("s_waitcnt lgkmcnt(0)")
                    i("s_sub_u32 s64, s64, s62")
                    i(f"s_min_u32 s{73+h}, s{73+h}, s64")
            i("s_cmp_lt_u32 s73, s74")
            i("s_cselect_b32 s75, 0, 1")
            i("s_lshl_b32 s75, s75, s71")
            i("s_or_b32 s72, s72, s75")
            i("s_add_u32 s60, s60, 0x200000")
            i("s_addc_u32 s61, s61, 0")
            i("s_add_u32 s71, s71, 1")
            i(f"s_cmp_lt_u32 s71, {npg}")
            i(f"s_cbranch_scc1 L_pg{bi}")
            i(f"v_writelane_b32 v{V_ZA}, s72, {1+bi}")
            i(f"v_writelane_b32 v{V_ZA}, s{base}, {5+bi}")
        i(f"v_writelane_b32 v{V_ZA}, s73, 9")
        i(f"v_writelane_b32 v{V_ZA}, s74, 10")
        i("s_mov_b64 exec, 0x7ff")
        i(f"buffer_store_dword v{V_ZA}, v{V_L4}, s[28:31], 0 offen offset:4")
    a("L_end:")
    i("s_endpgm")
    a("L_flagspin:")
    a.c("rare: the zeroing-done flag was not up yet when this wave read it")
    i(f"buffer_load_dword v{V_FLAG}, off, s[28:31], 0 sc1")
    i("s_waitcnt vmcnt(0)")
    i(f"v_readfirstlane_b32 s43, v{V_FLAG}")
    i("s_sub_u32 s50, s50, 1")
    i("s_cbranch_scc1 L_flagok")
    i("s_cmp_eq_u32 s43, 0")
    i("s_cbranch_scc1 L_flagspin")
    i("s_branch L_flagok")
    a("L_zero:")
    a.c("WG 0, wave 0: zero the replica accumulators and the published area, then raise the flag in d_debug")
    i("s_mov_b64 exec, -1")
    i(f"v_lshrrev_b32 v{T}, 2, v{V_LANE}")
    i(f"v_mul_u32_u24 v{T}, {LS}, v{T}")
    i(f"v_and_b32 v{T+1}, 3, v{V_LANE}")
    i(f"v_lshl_add_u32 v{V_ZA}, v{T+1}, 4, v{T}")
    for r in range(4):
        i(f"v_mov_b32 v{P+r}, 0")
    i("s_mov_b32 s43, 0")
    for k in range(NP):
        i(f"buffer_store_dwordx4 v[{P}:{P+3}], v{V_ZA}, s[24:27], s43 offen sc1")
        i(f"s_add_u32 s43, s43, {16*LS}")
    for c in range(G):
        for k in range(NP):
            i(f"s_mov_b32 s43, {FIN + c*CS + 16*PS*k}")
            i(f"buffer_store_dwordx4 v[{P}:{P+3}], v{V_POLL}, s[24:27], s43 offen sc1")
    i(f"v_mov_b32 v{T+4}, 1")
    i("s_waitcnt vmcnt(0)")
    i("s_mov_b64 exec, 1")
    i(f"buffer_store_dword v{T+4}, off, s[28:31], 0 sc1")
    i("s_mov_b64 exec, s[44:45]")
    i("s_branch L_loads")
    a(f""".section .rodata,"a"
.p2align 6
.amdhsa_kernel {KNAME}
  .amdhsa_next_free_vgpr {NV}
  .amdhsa_next_free_sgpr 100
  .amdhsa_accum_offset {ACC}
  .amdhsa_group_segment_fixed_size 0
  .amdhsa_kernarg_size 48
  .amdhsa_user_sgpr_count 2
  .amdhsa_user_sgpr_kernarg_segment_ptr 1
  .amdhsa_system_sgpr_workgroup_id_x 1
  .amdhsa_float_denorm_mode_32 3
.end_amdhsa_kernel""")
    return a.text()


def main():
    ap = argparse.ArgumentParser()
    ap.add_argument("-o", default="-")
    ap.add_argument("--xcdswz", type=int, default=2)
    ap.add_argument("--R", type=int, default=4)
    ap.add_argument("--K", type=int, default=3)
    ap.add_argument("--LS", type=int, default=256)
    ap.add_argument("--lds", type=int, default=0)
    ap.add_argument("--bar0", type=int, default=3)
    ap.add_argument("--slots", type=int, default=1)
    ap.add_argument("--latebar", type=int, default=1)
    ap.add_argument("--PS", type=int, default=64)
    ap.add_argument("--pollsleep", type=int, default=0)
    ap.add_argument("--G", type=int, default=0)
    ap.add_argument("--cpad", type=int, default=0)
    ap.add_argument("--numa", type=int, default=0)
    ap.add_argument("--iodprobe", type=int, default=0)
    ap.add_argument("--diag", type=int, default=0)
    ap.add_argument("--touch", type=int, default=0)
    ap.add_argument("--ldflags", default="nt")
    ap.add_argument("--stflags", default="nt")
    ap.add_argument("--stflags2", default="nt+sc1")
    ap.add_argument("--nst2", type=int, default=4)
    ap.add_argument("--nst2e", type=int, default=0)
    ap.add_argument("--stamps", type=int, default=0)
    ap.add_argument("--probe", default="")
    ap.add_argument("--x9", default="")
    o = ap.parse_args()
    t = gen(o)
    if o.o == "-":
        sys.stdout.write(t)
    else:
        open(o.o, "w").write(t)


if __name__ == "__main__":
    main()
```

```python
import argparse
import struct
import sys

XBYTES = 512 * 512 * 96 * 2
NWG = 256
KNAME = "standalone__se_block__vision_kernel"

HEADER = """; Kernarg layout for this problem (48 bytes, ptrs only, base s[0:1]):
;
;     atomics; 16-byte granules {3 sums, count}; the WG that sees the final count publishes
"""


def f2u(x):
    return struct.unpack("<I", struct.pack("<f", x))[0]


class Asm:
    def __init__(self):
        self.l = []

    def __call__(self, s):
        for line in s.strip("\n").split("\n"):
            self.l.append(line)

    def i(self, s, c=None):
        self.l.append("    " + s + (f"    ; {c}" if c else ""))

    def c(self, s):
        self.l.append("    ; " + s)

    def text(self):
        return "\n".join(self.l) + "\n"


def gen(o):
    W = 8
    L = 32
    UNIT = 768
    R = 4
    LS = 256
    near = o.near
    a = Asm()
    i = a.i
    LDS_TR = 0
    LDS_SCALE = 512
    LDS_CNT = 1024
    LDS_SLOT = 1280
    lds = LDS_SLOT + W * 512
    a(HEADER)
    a(f"; @launch grid=({NWG},1,1) block=({W*64},1,1) lds={lds}")
    a(f""".amdgcn_target "amdgcn-amd-amdhsa--gfx950"
.text
.globl {KNAME}
.p2align 8
.type {KNAME},@function
{KNAME}:""")

    V_OFF = 1
    V_A = 2
    V_D = 6
    V_LANE = 10
    V_POLL = 11
    V_ATOM = 12
    V_FLAG = 13
    V_L4 = 14
    V_SCA = 15
    V_WRA = 16
    V_RDA = 17
    V_TRA = 18
    V_PUB = 19
    V_T = 20
    V_ONE = 28
    V_CNA = 29
    V_ZA = 30
    V_WD = 31
    V_WU = 40
    V_SC = 52
    V_Q = 60
    V_DATA = 76
    NV = V_DATA + 4 * L
    dreg = lambda k: f"v[{V_DATA+4*k}:{V_DATA+4*k+3}]"
    T = V_T
    P = V_SC
    Q = V_Q

    nstamp = [0]

    def stamp(k):
        if not o.stamps:
            return
        nstamp[0] = max(nstamp[0], k + 1)
        i(f"s_memrealtime s[{60+2*k}:{61+2*k}]")

    def x9(tag):
        if o.x9 == tag:
            i("s_memrealtime s[78:79]")

    ldf = o.ldflags.replace("+", " ")
    stf = o.stflags.replace("+", " ")
    stf2 = o.stflags2.replace("+", " ")
    wg_stride, wave_stride, u_stride = W * UNIT, UNIT, NWG * W * UNIT

    def mem(op, k, reg, srd, flags):
        i(f"{op} {reg}, v{V_OFF}, {srd}, s40 offen {flags}".rstrip())
        if k != L - 1:
            i(f"s_add_u32 s40, s40, {u_stride}")

    stamp(0)
    if o.stamps:
        i("s_memtime s[88:89]")
    i("s_load_dwordx2 s[16:17], s[0:1], 0", "x")
    i("s_load_dwordx2 s[24:25], s[0:1], 40", "ws")
    i("s_load_dwordx2 s[28:29], s[0:1], 32", "debug")
    i("s_load_dwordx2 s[20:21], s[0:1], 24", "out")
    i("s_load_dwordx2 s[32:33], s[0:1], 8", "w_down")
    i("s_load_dwordx2 s[36:37], s[0:1], 16", "w_up")
    i(f"s_cmp_ge_u32 s2, {NWG}")
    i("s_cbranch_scc1 L_end", "workgroups past the data exit")
    i(f"v_lshrrev_b32 v{T}, 6, v0")
    i(f"v_and_b32 v{V_LANE}, 63, v0")
    i(f"v_readfirstlane_b32 s3, v{T}", "wave id")
    i(f"v_and_b32 v{T+1}, 15, v0", "n = 16-byte chunk of the pixel (12 used)")
    i(f"v_bfe_u32 v{T+2}, v0, 4, 2", "q = pixel of the 4")
    i(f"v_mul_u32_u24 v{V_OFF}, 192, v{T+2}")
    i(f"v_lshl_add_u32 v{V_OFF}, v{T+1}, 4, v{V_OFF}")
    if o.xcdswz >= 2:
        g = o.xcdswz.bit_length() - 1
        a.c("WGs with equal id mod 8 get neighbouring 6 KiB pieces (speed only)")
        i("s_and_b32 s42, s2, 7")
        i(f"s_lshl_b32 s42, s42, {g}")
        i(f"s_bfe_u32 s43, s2, {3 | (g << 16)}")
        i("s_or_b32 s42, s42, s43")
        i(f"s_andn2_b32 s43, s2, {(8 << g) - 1}")
        i("s_or_b32 s42, s42, s43")
        i(f"s_mul_i32 s41, s42, {wg_stride}")
    else:
        i(f"s_mul_i32 s41, s2, {wg_stride}")
    i(f"s_mul_i32 s42, s3, {wave_stride}")
    i("s_add_u32 s41, s41, s42")
    i("s_mov_b32 s40, s41")
    i(f"s_mov_b32 s18, {XBYTES}")
    i("s_mov_b32 s19, 0x00020000")
    i(f"s_mov_b32 s22, {XBYTES}")
    i("s_mov_b32 s23, 0x00020000")
    i("s_mov_b32 s26, 0x10000000")
    i("s_mov_b32 s27, 0x00020000")
    i("s_mov_b32 s30, 256")
    i("s_mov_b32 s31, 0x00020000")
    i("s_mov_b32 s34, 1152")
    i("s_mov_b32 s35, 0x00020000")
    i("s_mov_b32 s38, 1152")
    i("s_mov_b32 s39, 0x00020000")
    i("s_mov_b32 s44, 0x0fff0fff")
    i("s_mov_b32 s45, 0x0fff0fff")
    i(f"v_lshlrev_b32 v{V_POLL}, 4, v{V_LANE}")
    i(f"v_mov_b32 v{V_CNA}, {LDS_CNT}")
    i(f"v_mov_b32 v{P}, 0")
    i(f"ds_write_b32 v{V_CNA}, v{P}", "arrival counter of the WG (every wave writes the same 0)")
    i("s_cmp_eq_u32 s2, 0")
    i("s_mov_b64 exec, s[44:45]")
    i("s_waitcnt lgkmcnt(0)")
    i("s_cbranch_scc1 L_zero")
    a("L_loads:")
    stamp(1)
    for k in range(L):
        mem("buffer_load_dwordx4", k, dreg(k), "s[16:19]", ldf)
        if o.x9 == f"f{k}":
            i(f"s_waitcnt vmcnt({k})")
            i("s_memrealtime s[78:79]")
        if k == o.bar0:
            i("s_cmp_eq_u32 s2, 0")
            i("s_cbranch_scc1 L_flag")
            i("s_barrier", "counter initialised")
            a("L_loads2:")
    i("s_mov_b64 exec, 1")
    i(f"buffer_load_dword v{V_FLAG}, off, s[28:31], 0 sc1", "zeroing-done flag")
    i("s_mov_b64 exec, -1")
    stamp(2)
    a.c("constants while the loads fly")
    i(f"v_and_b32 v{T}, 15, v{V_LANE}", "A[i][k] = 1 where k%8 == i (i<8): sums the 4 pixels per channel")
    i(f"v_and_b32 v{T+1}, 1, v{V_LANE}")
    i(f"v_lshlrev_b32 v{T+1}, 4, v{T+1}")
    i(f"v_mov_b32 v{T+2}, 0x3f80")
    i(f"v_lshlrev_b32 v{T+1}, v{T+1}, v{T+2}")
    i(f"v_lshrrev_b32 v{T+2}, 1, v{T}")
    for r in range(4):
        i(f"v_cmp_eq_u32 vcc, {r}, v{T+2}")
        i(f"v_mov_b32 v{V_D+r}, 0")
        i("s_nop 0")
        i(f"v_cndmask_b32 v{V_A+r}, 0, v{T+1}, vcc")
    a.c("slot write address: wave*512 + (n/6)*256 + (n%6)*32 + (u&1)*16")
    i(f"v_bfe_u32 v{T+3}, v{V_LANE}, 4, 1")
    i(f"v_lshlrev_b32 v{T+3}, 4, v{T+3}")
    i("s_lshl_b32 s42, s3, 9")
    i(f"s_add_u32 s42, s42, {LDS_SLOT}")
    i(f"v_add_u32 v{T+3}, s42, v{T+3}")
    i(f"v_mul_u32_u24 v{T+5}, 43, v{T}")
    i(f"v_lshrrev_b32 v{T+5}, 8, v{T+5}")
    i(f"v_mul_u32_u24 v{T+6}, 6, v{T+5}")
    i(f"v_sub_u32 v{T+6}, v{T}, v{T+6}")
    i(f"v_lshl_add_u32 v{V_WRA}, v{T+5}, 8, v{T+3}")
    i(f"v_lshl_add_u32 v{V_WRA}, v{T+6}, 5, v{V_WRA}")
    i(f"v_lshrrev_b32 v{T+4}, 2, v{V_LANE}")
    i(f"v_and_b32 v{T+5}, 3, v{V_LANE}")
    i(f"v_mul_u32_u24 v{V_RDA}, 3, v{T+4}")
    i(f"v_add_lshl_u32 v{V_RDA}, v{V_RDA}, v{T+5}, 2", "slot read address: (3*(l>>2) + (l&3))*4")
    i(f"v_lshlrev_b32 v{T+6}, 5, v{T}")
    i(f"v_add_u32 v{V_SCA}, {LDS_SCALE}, v{T+6}", "scale address: n*32")
    i(f"v_lshrrev_b32 v{T+6}, 4, v{V_LANE}", "line")
    i(f"v_lshlrev_b32 v{V_TRA}, 6, v{T+6}")
    i(f"v_lshl_add_u32 v{V_TRA}, v{T+5}, 4, v{V_TRA}", "transpose address: line*64 + granule*16")
    i(f"v_bfe_u32 v{T+7}, v{V_LANE}, 2, 1")
    i(f"v_lshl_add_u32 v{V_PUB}, v{T+7}, 11, v{V_TRA}")
    i(f"v_bfe_u32 v{T+7}, v{V_LANE}, 3, 1")
    i(f"v_lshl_add_u32 v{V_PUB}, v{T+7}, 13, v{V_PUB}", "publish address: + copy")
    i(f"v_lshlrev_b32 v{T+6}, 8, v{T+6}")
    i(f"v_lshl_add_u32 v{V_ATOM}, v{T}, 2, v{T+6}", "atomic address: line*256 + (l&15)*4")
    i(f"v_lshlrev_b32 v{V_L4}, 2, v{V_LANE}")
    i(f"v_mov_b32 v{V_ONE}, 1")
    i("s_mov_b32 s46, 0x88888888")
    i("s_mov_b32 s47, 0x88888888")
    i(f"s_mov_b32 s51, {f2u(float(NWG // R)):#x}", "WGs per replica, as float")
    i("s_mov_b32 s50, 0x200000", "spin budget")
    if near:
        i("s_getreg_b32 s54, hwreg(HW_REG_XCC_ID, 0, 3)")

    def sync_offsets():
        if near:
            i("s_lshr_b32 s42, s43, 1", "XCC of WG 0")
            i("s_add_u32 s42, s42, s2")
            i("s_lshr_b32 s43, s43, 2")
            i("s_xor_b32 s42, s42, s43", "bit 2: side the id is expected on ^ side of region 0")
            i("s_xor_b32 s52, s54, s43")
            i("s_bfe_u32 s42, s42, 0x10002")
            i("s_bfe_u32 s52, s52, 0x10002")
            i("s_and_b32 s53, s54, 1")
        else:
            i("s_bfe_u32 s42, s2, 0x10002")
            i("s_bfe_u32 s52, s2, 0x10001")
            i("s_and_b32 s53, s2, 1")
        i("s_bfe_u32 s43, s2, 0x10003")
        i("s_lshl_b32 s48, s42, 13")
        i("s_lshl_b32 s49, s43, 11")
        i("s_add_u32 s48, s48, s49")
        i(f"s_add_u32 s49, s48, {4*LS}")
        i("s_lshl_b32 s56, s42, 1")
        i("s_add_u32 s56, s56, s43")
        i("s_lshl_b32 s56, s56, 9")
        i("s_add_u32 s56, s56, 4096")
        i("s_add_u32 s57, s56, 256")
        i("s_lshl_b32 s52, s52, 13")
        i("s_lshl_b32 s53, s53, 11")
        i("s_add_u32 s52, s52, s53")
        i("s_add_u32 s52, s52, 4096")
        i("s_add_u32 s53, s52, 1024")

    if not near:
        sync_offsets()
    a.c("wave 0 fetches the weights (its counted waits below only get stricter)")
    i("s_cmp_lg_u32 s3, 0")
    i("s_cbranch_scc1 L_now")
    for r in range(21):
        i(f"v_mov_b32 v{V_WD+r}, 0")
    i(f"v_and_b32 v{T}, 31, v{V_LANE}")
    i(f"v_lshrrev_b32 v{T+1}, 5, v{V_LANE}")
    i(f"v_mul_u32_u24 v{T+2}, 36, v{T}")
    i(f"v_mul_u32_u24 v{T+3}, 6, v{T+1}")
    i(f"v_add_u32 v{T+2}, v{T+2}, v{T+3}")
    i(f"v_lshlrev_b32 v{T+3}, 1, v{V_LANE}")
    for ii in range(3):
        for jj in range(3):
            i(f"buffer_load_short_d16_hi v{V_WD+3*ii+jj}, v{T+2}, s[32:35], 0 offen offset:{12*ii+2*jj}")
    for j in range(6):
        for h in range(2):
            i(f"buffer_load_short_d16_hi v{V_WU+2*j+h}, v{T+3}, s[36:39], 0 offen offset:{192*j+128*h}")
    a("L_now:")
    for k in range(L):
        i(f"s_waitcnt vmcnt({L-k})")
        i(f"v_mfma_f32_16x16x32_bf16 v[{V_D}:{V_D+3}], v[{V_A}:{V_A+3}], {dreg(k)}, v[{V_D}:{V_D+3}]")
    stamp(3)
    if o.stamps:
        i("s_mov_b32 s68, 0")
        if not o.x9.startswith("f"):
            i("s_mov_b32 s78, 0")
    S0, S1 = T, T + 1
    i("s_mov_b32 exec_lo, 0x0fff0fff")
    i("s_mov_b32 exec_hi, 0")
    i("s_waitcnt vmcnt(0)")
    i(f"v_readfirstlane_b32 s43, v{V_FLAG}")
    i("s_nop 3")
    i(f"ds_write_b128 v{V_WRA}, v[{V_D}:{V_D+3}]")
    i("s_mov_b64 exec, 1")
    i(f"ds_add_rtn_u32 v{T+7}, v{V_CNA}, v{V_ONE}")
    i("s_mov_b64 exec, -1")
    for k in range(W):
        i(f"ds_read2st64_b32 v[{Q+2*k}:{Q+2*k+1}], v{V_RDA} offset0:{LDS_SLOT//256+2*k} offset1:{LDS_SLOT//256+2*k+1}")
    i("s_cmp_eq_u32 s43, 0")
    i("s_cbranch_scc1 L_flagspin")
    a("L_flagok:")
    if near:
        sync_offsets()
    i(f"s_waitcnt lgkmcnt({W})" if not o.stamps else "s_waitcnt lgkmcnt(0)")
    i(f"v_readfirstlane_b32 s42, v{T+7}")
    i(f"s_cmp_lg_u32 s42, {W-1}")
    i("s_cbranch_scc1 L_notlast")
    a.c("last wave of the WG: the slot reads above saw every wave's sums")
    step = 1
    while step < W:
        for k in range(0, W, 2 * step):
            if step == 1:
                i(f"s_waitcnt lgkmcnt({W-2-k})")
            dst = T + 2 if step * 2 >= W else Q + 2 * k
            i(f"v_pk_add_f32 v[{dst}:{dst+1}], v[{Q+2*k}:{Q+2*k+1}], v[{Q+2*(k+step)}:{Q+2*(k+step)+1}]")
        step *= 2
    i(f"v_cndmask_b32 v{S0}, v{T+2}, 1.0, s[46:47]")
    i(f"v_cndmask_b32 v{S1}, v{T+3}, 1.0, s[46:47]")
    i(f"buffer_atomic_add_f32 v{S0}, v{V_ATOM}, s[24:27], s48 offen sc0")
    i(f"buffer_atomic_add_f32 v{S1}, v{V_ATOM}, s[24:27], s49 offen sc0")
    stamp(4)
    i(f"v_cndmask_b32 v{T+2}, v{T+2}, 1.0, s[46:47]")
    i(f"v_cndmask_b32 v{T+3}, v{T+3}, 1.0, s[46:47]")
    i("s_waitcnt vmcnt(1)")
    i(f"v_add_f32 v{T+2}, v{T+2}, v{S0}")
    i("s_waitcnt vmcnt(0)")
    i(f"v_add_f32 v{T+3}, v{T+3}, v{S1}")
    x9("atom")
    a.c("transpose through LDS: lane (line, copy, granule) gets one whole 16-byte granule")
    i(f"ds_write2st64_b32 v{V_L4}, v{T+2}, v{T+3} offset0:0 offset1:1")
    i(f"ds_read_b128 v[{P}:{P+3}], v{V_TRA}")
    i(f"ds_read_b128 v[{P+4}:{P+7}], v{V_TRA} offset:256")
    i("s_waitcnt lgkmcnt(1)" if not o.stamps else "s_waitcnt lgkmcnt(0)")
    i(f"v_cmp_eq_f32 vcc, s51, v{P+3}")
    i("s_and_b64 exec, vcc, vcc")
    i("s_cbranch_scc0 L_nopubA")
    i(f"buffer_store_dwordx4 v[{P}:{P+3}], v{V_PUB}, s[24:27], s56 offen sc1")
    a("L_nopubA:")
    i("s_mov_b64 exec, -1")
    i("s_waitcnt lgkmcnt(0)")
    i(f"v_cmp_eq_f32 vcc, s51, v{P+7}")
    i("s_and_b64 exec, vcc, vcc")
    i("s_cbranch_scc0 L_nopubB")
    i(f"buffer_store_dwordx4 v[{P+4}:{P+7}], v{V_PUB}, s[24:27], s57 offen sc1")
    a("L_nopubB:")
    i("s_mov_b64 exec, -1")
    a("L_notlast:")
    i("s_cmp_lg_u32 s3, 0")
    i("s_cbranch_scc1 L_wait1")
    i("s_mov_b32 s43, 0x36800000", "2^-18 (1/pixels) folded into w_down")
    for r in range(9):
        i(f"v_mul_f32 v{V_WD+r}, s43, v{V_WD+r}")
    i("s_mov_b32 s42, 0xbfb8aa3b", "-log2(e)")
    i("s_barrier")
    a.c("wave 0: poll the published replica sums")
    a("L_poll:")
    i(f"buffer_load_dwordx4 v[{Q}:{Q+3}], v{V_POLL}, s[24:27], s52 offen sc1")
    i(f"buffer_load_dwordx4 v[{Q+4}:{Q+7}], v{V_POLL}, s[24:27], s53 offen sc1")
    i("s_sub_u32 s50, s50, 1")
    i("s_cbranch_scc1 L_done")
    i("s_waitcnt vmcnt(1)")
    i(f"v_cmp_eq_f32 vcc, s51, v{Q+3}")
    i("s_waitcnt vmcnt(0)")
    i(f"v_cmp_eq_f32 s[4:5], s51, v{Q+7}")
    i("s_and_b64 vcc, vcc, s[4:5]")
    i("s_cmp_eq_u64 vcc, -1")
    i("s_cbranch_scc0 L_poll")
    a("L_done:")
    stamp(5)
    i(f"v_pk_add_f32 v[{P}:{P+1}], v[{Q}:{Q+1}], v[{Q+4}:{Q+5}]")
    i(f"v_pk_add_f32 v[{P+4}:{P+5}], v[{Q}:{Q+1}], v[{Q+4}:{Q+5}]")
    i(f"v_add_f32 v{P+2}, v{Q+2}, v{Q+6}")
    i(f"v_add_f32 v{P+6}, v{Q+2}, v{Q+6}")
    i(f"v_permlane32_swap_b32 v{P+4}, v{P}")
    i(f"v_permlane32_swap_b32 v{P+5}, v{P+1}")
    i(f"v_permlane32_swap_b32 v{P+6}, v{P+2}")
    i(f"v_pk_add_f32 v[{P}:{P+1}], v[{P}:{P+1}], v[{P+4}:{P+5}]")
    i(f"v_add_f32 v{P+2}, v{P+2}, v{P+6}")
    for r in range(3):
        i(f"v_cvt_pk_bf16_f32 v{P+r}, 0, v{P+r}", "sum rounded to bf16, left in the high half" if r == 0 else None)
    H = P + 4
    for jj in range(3):
        i(f"v_mul_f32 v{H+jj}, v{P}, v{V_WD+jj}")
    for ii in (1, 2):
        for jj in range(3):
            i(f"v_fmac_f32 v{H+jj}, v{P+ii}, v{V_WD+3*ii+jj}")
    for dpp in ("quad_perm:[1,0,3,2]", "quad_perm:[2,3,0,1]", "row_half_mirror", "row_mirror"):
        for jj in range(3):
            i(f"v_add_f32_dpp v{H+jj}, v{H+jj}, v{H+jj} {dpp} row_mask:0xf bank_mask:0xf")
    for jj in range(3):
        i(f"v_add_f32_dpp v{P}, v{H+jj}, v{H+jj} row_bcast:15 row_mask:0xa bank_mask:{1 << jj:#x}",
          "h[j] -> lane 16 + 4*(j%3) + 32*(j/3)" if jj == 0 else None)
    i(f"v_cvt_pk_bf16_f32 v{H}, 0, v{P}", "h (bf16)")
    i(f"v_mul_f32 v{P}, s42, v{H}")
    i(f"v_exp_f32 v{P}, v{P}")
    i("s_nop 0")
    i(f"v_add_f32 v{P}, 1.0, v{P}")
    i(f"v_rcp_f32 v{P}, v{P}")
    i("s_nop 0")
    i(f"v_mul_f32 v{H}, v{H}, v{P}")
    i(f"v_cvt_pk_bf16_f32 v{H}, 0, v{H}", "silu(h) (bf16)")
    i("s_nop 0")
    for j in range(6):
        i(f"v_readlane_b32 s{8+j}, v{H}, {16 + 4*(j % 3) + 32*(j//3)}")
    Z = P
    sel = lambda j: "op_sel:[0,1,0] op_sel_hi:[1,1,1]" if j & 1 else "op_sel:[0,0,0] op_sel_hi:[1,0,1]"
    i(f"v_pk_mul_f32 v[{Z}:{Z+1}], v[{V_WU}:{V_WU+1}], s[8:9] op_sel:[0,0] op_sel_hi:[1,0]")
    for j in range(1, 6):
        sp = 8 + (j & ~1)
        i(f"v_pk_fma_f32 v[{Z}:{Z+1}], v[{V_WU+2*j}:{V_WU+2*j+1}], s[{sp}:{sp+1}], v[{Z}:{Z+1}] {sel(j)}")
    i(f"v_cvt_pk_bf16_f32 v{Z}, 0, v{Z}", "z (bf16)")
    i(f"v_cvt_pk_bf16_f32 v{Z+1}, 0, v{Z+1}")
    i(f"v_pk_mul_f32 v[{Z}:{Z+1}], v[{Z}:{Z+1}], s[42:43] op_sel:[0,0] op_sel_hi:[1,0]")
    i(f"v_exp_f32 v{Z}, v{Z}")
    i(f"v_exp_f32 v{Z+1}, v{Z+1}")
    i("s_nop 0")
    i(f"v_pk_add_f32 v[{Z}:{Z+1}], v[{Z}:{Z+1}], 1.0 op_sel_hi:[1,0]")
    i(f"v_rcp_f32 v{Z}, v{Z}")
    i(f"v_rcp_f32 v{Z+1}, v{Z+1}")
    i(f"v_cvt_pk_bf16_f32 v{Z}, 0, v{Z}", "sigmoid (bf16)")
    i(f"v_cvt_pk_bf16_f32 v{Z+1}, 0, v{Z+1}")
    i(f"ds_write2st64_b32 v{V_L4}, v{Z}, v{Z+1} offset0:{LDS_SCALE//256} offset1:{LDS_SCALE//256+1}")
    i("s_waitcnt lgkmcnt(0)")
    a("L_wait2:")
    i("s_barrier")
    i(f"ds_read_b128 v[{V_SC}:{V_SC+3}], v{V_SCA}")
    i(f"ds_read_b128 v[{V_SC+4}:{V_SC+7}], v{V_SCA} offset:16")
    i("s_mov_b64 exec, s[44:45]")
    i("s_mov_b32 s40, s41")
    stamp(6)
    i("s_mov_b32 s43, 0xffff0000")
    for k in range(L):
        d = V_DATA + 4 * k
        for r in range(4):
            i(f"v_lshlrev_b32 v{T+2*r}, 16, v{d+r}")
            i(f"v_and_b32 v{T+2*r+1}, s43, v{d+r}")
        if k == 0:
            i("s_waitcnt lgkmcnt(0)")
        for r in range(4):
            i(f"v_pk_mul_f32 v[{T+2*r}:{T+2*r+1}], v[{T+2*r}:{T+2*r+1}], v[{V_SC+2*r}:{V_SC+2*r+1}]")
        for r in range(4):
            i(f"v_cvt_pk_bf16_f32 v{d+r}, v{T+2*r}, v{T+2*r+1}")
        mem("buffer_store_dwordx4", k, f"v[{d}:{d+3}]", "s[20:23]", stf2 if k < o.nst2 or k >= L - o.nst2e else stf)
    if o.stamps:
        stamp(7)
        i("s_waitcnt vmcnt(0)")
        stamp(8)
        i("s_memtime s[90:91]")
        i("s_mov_b64 exec, -1")
        i("s_getreg_b32 s42, hwreg(HW_REG_HW_ID)")
        i("s_getreg_b32 s43, hwreg(HW_REG_XCC_ID)")
        i("s_waitcnt lgkmcnt(0)")
        i(f"v_mov_b32 v{V_ZA}, 0")
        for k in range(nstamp[0]):
            i(f"v_writelane_b32 v{V_ZA}, s{60+2*k}, {k}")
        i(f"v_writelane_b32 v{V_ZA}, s78, 9")
        i(f"v_writelane_b32 v{V_ZA}, s92, 10")
        i(f"v_writelane_b32 v{V_ZA}, s94, 13")
        i("s_sub_u32 s90, s90, s88")
        i(f"v_writelane_b32 v{V_ZA}, s90, 11")
        i("s_sub_u32 s50, 0x200000, s50")
        i(f"v_writelane_b32 v{V_ZA}, s50, 12")
        i(f"v_writelane_b32 v{V_ZA}, s42, 14")
        i(f"v_writelane_b32 v{V_ZA}, s43, 15")
        i("s_lshl_b32 s42, s2, 4")
        i("s_add_u32 s42, s42, s3")
        i("s_lshl_b32 s42, s42, 6")
        i("s_add_u32 s42, s42, 0x4000000")
        i("s_mov_b64 exec, 0xffff")
        i(f"buffer_store_dword v{V_ZA}, v{V_L4}, s[24:27], s42 offen")
        if o.probe:
            pa, pb, pk, pw = [int(x) for x in o.probe.split(",")]
            i("s_cmp_lg_u32 s3, 0")
            i("s_cbranch_scc1 L_end")
            i(f"s_cmp_lg_u32 s2, {pw}")
            i("s_cbranch_scc1 L_end")
            i(f"s_sub_u32 s42, s{60+2*pb}, s{60+2*pa}")
            i(f"s_mul_i32 s42, s42, {pk}")
            i("s_add_u32 s42, s42, 4000")
            i("s_min_u32 s42, s42, 20000")
            a("L_probe:")
            i("s_memrealtime s[50:51]")
            i("s_waitcnt lgkmcnt(0)")
            i("s_sub_u32 s43, s50, s60")
            i("s_cmp_lt_u32 s43, s42")
            i("s_cbranch_scc1 L_probe")
    a("L_end:")
    i("s_endpgm")
    a("L_wait1:")
    i("s_barrier")
    i("s_branch L_wait2")
    a("L_flagspin:")
    a.c("rare: the zeroing-done flag was not up yet when this wave read it")
    i(f"buffer_load_dword v{V_FLAG}, off, s[28:31], 0 sc1")
    i("s_waitcnt vmcnt(0)")
    i(f"v_readfirstlane_b32 s43, v{V_FLAG}")
    i("s_sub_u32 s50, s50, 1")
    i("s_cbranch_scc1 L_flagok")
    i("s_cmp_eq_u32 s43, 0")
    i("s_cbranch_scc1 L_flagspin")
    i("s_branch L_flagok")
    a("L_zero:")
    a.c("WG 0: every wave zeroes 2 KiB of the 16 KiB hand-off area")
    i("s_mov_b64 exec, -1")
    for r in range(1, 4):
        i(f"v_mov_b32 v{P+r}, 0")
    if near:
        i(f"s_cmp_lg_u32 s3, {o.flagwave}")
        i("s_cbranch_scc1 L_zero2")
        i("s_load_dword s6, s[24:25], 16384 glc", "first touch of the two lines timed below")
        i("s_load_dword s7, s[24:25], 24576 glc")
        a("L_zero2:")
    i("s_lshl_b32 s42, s3, 11")
    i(f"buffer_store_dwordx4 v[{P}:{P+3}], v{V_POLL}, s[24:27], s42 offen sc1")
    i(f"buffer_store_dwordx4 v[{P}:{P+3}], v{V_POLL}, s[24:27], s42 offen offset:1024 sc1")
    i("s_mov_b64 exec, s[44:45]")
    i("s_branch L_loads")
    a("L_flag:")
    a.c("WG 0: zero stores acknowledged in every wave, then one wave raises the flag")
    i(f"s_waitcnt vmcnt({o.bar0 + 1})")
    i("s_barrier")
    i(f"s_cmp_lg_u32 s3, {o.flagwave}")
    i("s_cbranch_scc1 L_loads2")
    if near:
        a.c("which of the two 8 KiB regions is closer to this die (speed only): timed uncached scalar reads")
        i("s_mov_b32 s4, -1")
        i("s_mov_b32 s5, -1")
        i("s_waitcnt lgkmcnt(0)")
        for r in range(o.near):
            for h in range(2):
                i("s_memtime s[8:9]")
                i("s_waitcnt lgkmcnt(0)")
                i(f"s_load_dword s6, s[24:25], {16384 + 8192*h} glc")
                i("s_waitcnt lgkmcnt(0)")
                i("s_memtime s[10:11]")
                i("s_waitcnt lgkmcnt(0)")
                i("s_sub_u32 s10, s10, s8")
                i(f"s_min_u32 s{4+h}, s{4+h}, s10")
        if o.stamps:
            i("s_lshl_b32 s92, s5, 16")
            i("s_or_b32 s92, s92, s4")
            i("s_memrealtime s[94:95]")
        i("s_getreg_b32 s6, hwreg(HW_REG_XCC_ID, 0, 3)")
        i("s_cmp_lt_u32 s4, s5")
        i("s_cselect_b32 s4, 0, 4")
        i("s_xor_b32 s4, s4, s6")
        i("s_and_b32 s4, s4, 4", "bit 2: side of region 0")
        i("s_lshl_b32 s4, s4, 2")
        i("s_lshl_b32 s6, s6, 1")
        i("s_or_b32 s4, s4, s6")
        i("s_or_b32 s4, s4, 1", "flag = 1 | XCC << 1 | side << 4")
        i(f"v_mov_b32 v{T+4}, s4")
    else:
        i(f"v_mov_b32 v{T+4}, 1")
    i("s_mov_b64 exec, 1")
    i(f"buffer_store_dword v{T+4}, off, s[28:31], 0 sc1")
    i("s_mov_b64 exec, s[44:45]")
    i("s_branch L_loads2")
    a(f""".section .rodata,"a"
.p2align 6
.amdhsa_kernel {KNAME}
  .amdhsa_next_free_vgpr {NV}
  .amdhsa_next_free_sgpr {96 if o.stamps else 64}
  .amdhsa_accum_offset {(NV + 3) // 4 * 4}
  .amdhsa_group_segment_fixed_size 0
  .amdhsa_kernarg_size 48
  .amdhsa_user_sgpr_count 2
  .amdhsa_user_sgpr_kernarg_segment_ptr 1
  .amdhsa_system_sgpr_workgroup_id_x 1
  .amdhsa_float_denorm_mode_32 3
.end_amdhsa_kernel""")
    return a.text()


def main():
    ap = argparse.ArgumentParser()
    ap.add_argument("-o", default="-")
    ap.add_argument("--xcdswz", type=int, default=2)
    ap.add_argument("--bar0", type=int, default=5)
    ap.add_argument("--near", type=int, default=0)
    ap.add_argument("--flagwave", type=int, default=7)
    ap.add_argument("--ldflags", default="nt")
    ap.add_argument("--stflags", default="nt")
    ap.add_argument("--stflags2", default="nt+sc1")
    ap.add_argument("--nst2", type=int, default=4)
    ap.add_argument("--nst2e", type=int, default=0)
    ap.add_argument("--stamps", type=int, default=0)
    ap.add_argument("--probe", default="")
    ap.add_argument("--x9", default="")
    o = ap.parse_args()
    t = gen(o)
    if o.o == "-":
        sys.stdout.write(t)
    else:
        open(o.o, "w").write(t)


if __name__ == "__main__":
    main()
```

```python
import argparse
import struct
import sys

XBYTES = 512 * 512 * 96 * 2
NWG = 256
KNAME = "standalone__se_block__vision_kernel"

HEADER = """; Kernarg layout for this problem (48 bytes, ptrs only, base s[0:1]):
;
;     atomics; 16-byte granules {3 sums, count}; the WG that sees the final count publishes
"""


def f2u(x):
    return struct.unpack("<I", struct.pack("<f", x))[0]


class Asm:
    def __init__(self):
        self.l = []

    def __call__(self, s):
        for line in s.strip("\n").split("\n"):
            self.l.append(line)

    def i(self, s, c=None):
        self.l.append("    " + s + (f"    ; {c}" if c else ""))

    def c(self, s):
        self.l.append("    ; " + s)

    def text(self):
        return "\n".join(self.l) + "\n"


def gen(o):
    W = 8
    L = 32
    UNIT = 768
    R = 4
    LS = 256
    near = o.near
    a = Asm()
    i = a.i
    LDS_TR = 0
    LDS_SCALE = 512
    LDS_CNT = 1024
    LDS_SLOT = 1280
    lds = LDS_SLOT + W * 512
    a(HEADER)
    a(f"; @launch grid=({NWG},1,1) block=({W*64},1,1) lds={lds}")
    a(f""".amdgcn_target "amdgcn-amd-amdhsa--gfx950"
.text
.globl {KNAME}
.p2align 8
.type {KNAME},@function
{KNAME}:""")

    V_OFF = 1
    V_A = 2
    V_D = 6
    V_LANE = 10
    V_POLL = 11
    V_ATOM = 12
    V_FLAG = 13
    V_L4 = 14
    V_SCA = 15
    V_WRA = 16
    V_RDA = 17
    V_TRA = 18
    V_PUB = 19
    V_T = 20
    V_ONE = 28
    V_CNA = 29
    V_ZA = 30
    V_WD = 31
    V_WU = 40
    V_SC = 52
    V_Q = 60
    V_DATA = 76
    NV = V_DATA + 4 * L
    dreg = lambda k: f"v[{V_DATA+4*k}:{V_DATA+4*k+3}]"
    T = V_T
    P = V_SC
    Q = V_Q

    nstamp = [0]

    def stamp(k):
        if not o.stamps:
            return
        nstamp[0] = max(nstamp[0], k + 1)
        i(f"s_memrealtime s[{60+2*k}:{61+2*k}]")

    def x9(tag):
        if o.x9 == tag:
            i("s_memrealtime s[78:79]")

    ldf = o.ldflags.replace("+", " ")
    stf = o.stflags.replace("+", " ")
    stf2 = o.stflags2.replace("+", " ")
    wg_stride, wave_stride, u_stride = W * UNIT, UNIT, NWG * W * UNIT

    def mem(op, k, reg, srd, flags):
        i(f"{op} {reg}, v{V_OFF}, {srd}, s40 offen {flags}".rstrip())
        if k != L - 1:
            i(f"s_add_u32 s40, s40, {u_stride}")

    stamp(0)
    if o.stamps:
        i("s_memtime s[88:89]")
    if o.minpro:
        i("s_load_dwordx2 s[16:17], s[0:1], 0", "x")
        i("s_load_dwordx2 s[24:25], s[0:1], 40", "ws")
        i(f"v_lshrrev_b32 v{T}, 6, v0")
        i(f"v_and_b32 v{T+1}, 15, v0", "n = 16-byte chunk of the pixel (12 used)")
        i(f"v_readfirstlane_b32 s3, v{T}", "wave id")
        i(f"v_bfe_u32 v{T+2}, v0, 4, 2", "q = pixel of the 4")
        i(f"s_cmp_ge_u32 s2, {NWG}")
        i("s_cbranch_scc1 L_end", "workgroups past the data exit")
        i(f"v_mul_u32_u24 v{V_OFF}, 192, v{T+2}")
        i(f"v_lshl_add_u32 v{V_OFF}, v{T+1}, 4, v{V_OFF}")
        if o.xcdswz == 2:
            a.c("WGs with equal id mod 8 get neighbouring 6 KiB pieces (speed only)")
            i("s_and_b32 s42, s2, 7")
            i("s_bfe_u32 s43, s2, 0x10003")
            i("s_lshl1_add_u32 s42, s42, s43")
            i("s_andn2_b32 s43, s2, 15")
            i("s_or_b32 s42, s42, s43")
            i("s_lshl3_add_u32 s41, s42, s3")
        else:
            i("s_lshl3_add_u32 s41, s2, s3")
        i(f"s_mulk_i32 s41, {UNIT}")
        i(f"s_mov_b32 s18, {XBYTES}")
        i("s_mov_b32 s19, 0x00020000")
        i("s_mov_b32 exec_lo, 0x0fff0fff")
        i("s_mov_b32 s40, s41")
        i("s_mov_b32 exec_hi, exec_lo")
        i("s_cmp_eq_u32 s2, 0")
        x9("pre")
        i("s_waitcnt lgkmcnt(0)")
        i("s_cbranch_scc1 L_zero")
        a("L_loads:")
        stamp(1)
        for k in range(L):
            mem("buffer_load_dwordx4", k, dreg(k), "s[16:19]", ldf)
            if o.x9 == f"f{k}":
                i(f"s_waitcnt vmcnt({k})")
                i("s_memrealtime s[78:79]")
            if k == o.bar0:
                i("s_load_dwordx2 s[28:29], s[0:1], 32", "debug")
                i("s_load_dwordx2 s[20:21], s[0:1], 24", "out")
                i("s_load_dwordx2 s[32:33], s[0:1], 8", "w_down")
                i("s_load_dwordx2 s[36:37], s[0:1], 16", "w_up")
                i("s_mov_b64 s[44:45], exec")
                i("s_mov_b64 exec, -1")
                i(f"v_mov_b32 v{V_CNA}, {LDS_CNT}")
                i(f"v_mov_b32 v{T}, 0")
                i(f"v_and_b32 v{V_LANE}, 63, v0")
                i(f"ds_write_b32 v{V_CNA}, v{T}", "arrival counter of the WG (every wave writes the same 0)")
                i(f"v_lshlrev_b32 v{V_POLL}, 4, v{V_LANE}")
                i("s_mov_b64 exec, s[44:45]")
                i("s_mov_b32 s22, s18")
                i("s_mov_b32 s23, 0x00020000")
                i("s_mov_b32 s26, 0x10000000")
                i("s_mov_b32 s27, 0x00020000")
                i("s_movk_i32 s30, 256")
                i("s_mov_b32 s31, 0x00020000")
                i("s_movk_i32 s34, 1152")
                i("s_mov_b32 s35, 0x00020000")
                i("s_movk_i32 s38, 1152")
                i("s_mov_b32 s39, 0x00020000")
                i("s_cmp_eq_u32 s2, 0")
                i("s_waitcnt lgkmcnt(0)")
                i("s_cbranch_scc1 L_flag")
                i("s_barrier", "counter initialised")
                a("L_loads2:")
    else:
        i("s_load_dwordx2 s[16:17], s[0:1], 0", "x")
        i("s_load_dwordx2 s[24:25], s[0:1], 40", "ws")
        i("s_load_dwordx2 s[28:29], s[0:1], 32", "debug")
        i("s_load_dwordx2 s[20:21], s[0:1], 24", "out")
        i("s_load_dwordx2 s[32:33], s[0:1], 8", "w_down")
        i("s_load_dwordx2 s[36:37], s[0:1], 16", "w_up")
        i(f"s_cmp_ge_u32 s2, {NWG}")
        i("s_cbranch_scc1 L_end", "workgroups past the data exit")
        i(f"v_lshrrev_b32 v{T}, 6, v0")
        i(f"v_and_b32 v{V_LANE}, 63, v0")
        i(f"v_readfirstlane_b32 s3, v{T}", "wave id")
        i(f"v_and_b32 v{T+1}, 15, v0", "n = 16-byte chunk of the pixel (12 used)")
        i(f"v_bfe_u32 v{T+2}, v0, 4, 2", "q = pixel of the 4")
        i(f"v_mul_u32_u24 v{V_OFF}, 192, v{T+2}")
        i(f"v_lshl_add_u32 v{V_OFF}, v{T+1}, 4, v{V_OFF}")
        if o.xcdswz >= 2:
            g = o.xcdswz.bit_length() - 1
            a.c("WGs with equal id mod 8 get neighbouring 6 KiB pieces (speed only)")
            i("s_and_b32 s42, s2, 7")
            i(f"s_lshl_b32 s42, s42, {g}")
            i(f"s_bfe_u32 s43, s2, {3 | (g << 16)}")
            i("s_or_b32 s42, s42, s43")
            i(f"s_andn2_b32 s43, s2, {(8 << g) - 1}")
            i("s_or_b32 s42, s42, s43")
            i(f"s_mul_i32 s41, s42, {wg_stride}")
        else:
            i(f"s_mul_i32 s41, s2, {wg_stride}")
        i(f"s_mul_i32 s42, s3, {wave_stride}")
        i("s_add_u32 s41, s41, s42")
        i("s_mov_b32 s40, s41")
        i(f"s_mov_b32 s18, {XBYTES}")
        i("s_mov_b32 s19, 0x00020000")
        i(f"s_mov_b32 s22, {XBYTES}")
        i("s_mov_b32 s23, 0x00020000")
        i("s_mov_b32 s26, 0x10000000")
        i("s_mov_b32 s27, 0x00020000")
        i("s_mov_b32 s30, 256")
        i("s_mov_b32 s31, 0x00020000")
        i("s_mov_b32 s34, 1152")
        i("s_mov_b32 s35, 0x00020000")
        i("s_mov_b32 s38, 1152")
        i("s_mov_b32 s39, 0x00020000")
        i("s_mov_b32 s44, 0x0fff0fff")
        i("s_mov_b32 s45, 0x0fff0fff")
        i(f"v_lshlrev_b32 v{V_POLL}, 4, v{V_LANE}")
        i(f"v_mov_b32 v{V_CNA}, {LDS_CNT}")
        i(f"v_mov_b32 v{P}, 0")
        i(f"ds_write_b32 v{V_CNA}, v{P}", "arrival counter of the WG (every wave writes the same 0)")
        i("s_cmp_eq_u32 s2, 0")
        i("s_mov_b64 exec, s[44:45]")
        x9("pre")
        i("s_waitcnt lgkmcnt(0)")
        i("s_cbranch_scc1 L_zero")
        a("L_loads:")
        stamp(1)
        for k in range(L):
            mem("buffer_load_dwordx4", k, dreg(k), "s[16:19]", ldf)
            if o.x9 == f"f{k}":
                i(f"s_waitcnt vmcnt({k})")
                i("s_memrealtime s[78:79]")
            if k == o.bar0:
                i("s_cmp_eq_u32 s2, 0")
                i("s_cbranch_scc1 L_flag")
                i("s_barrier", "counter initialised")
                a("L_loads2:")
    i("s_mov_b64 exec, 1")
    i(f"buffer_load_dword v{V_FLAG}, off, s[28:31], 0 sc1", "zeroing-done flag")
    i("s_mov_b64 exec, -1")
    stamp(2)
    a.c("constants while the loads fly")
    i(f"v_and_b32 v{T}, 15, v{V_LANE}", "A[i][k] = 1 where k%8 == i (i<8): sums the 4 pixels per channel")
    i(f"v_and_b32 v{T+1}, 1, v{V_LANE}")
    i(f"v_lshlrev_b32 v{T+1}, 4, v{T+1}")
    i(f"v_mov_b32 v{T+2}, 0x3f80")
    i(f"v_lshlrev_b32 v{T+1}, v{T+1}, v{T+2}")
    i(f"v_lshrrev_b32 v{T+2}, 1, v{T}")
    for r in range(4):
        i(f"v_cmp_eq_u32 vcc, {r}, v{T+2}")
        i(f"v_mov_b32 v{V_D+r}, 0")
        i("s_nop 0")
        i(f"v_cndmask_b32 v{V_A+r}, 0, v{T+1}, vcc")
    a.c("slot write address: wave*512 + (n/6)*256 + (n%6)*32 + (u&1)*16")
    i(f"v_bfe_u32 v{T+3}, v{V_LANE}, 4, 1")
    i(f"v_lshlrev_b32 v{T+3}, 4, v{T+3}")
    i("s_lshl_b32 s42, s3, 9")
    i(f"s_add_u32 s42, s42, {LDS_SLOT}")
    i(f"v_add_u32 v{T+3}, s42, v{T+3}")
    i(f"v_mul_u32_u24 v{T+5}, 43, v{T}")
    i(f"v_lshrrev_b32 v{T+5}, 8, v{T+5}")
    i(f"v_mul_u32_u24 v{T+6}, 6, v{T+5}")
    i(f"v_sub_u32 v{T+6}, v{T}, v{T+6}")
    i(f"v_lshl_add_u32 v{V_WRA}, v{T+5}, 8, v{T+3}")
    i(f"v_lshl_add_u32 v{V_WRA}, v{T+6}, 5, v{V_WRA}")
    i(f"v_lshrrev_b32 v{T+4}, 2, v{V_LANE}")
    i(f"v_and_b32 v{T+5}, 3, v{V_LANE}")
    i(f"v_mul_u32_u24 v{V_RDA}, 3, v{T+4}")
    i(f"v_add_lshl_u32 v{V_RDA}, v{V_RDA}, v{T+5}, 2", "slot read address: (3*(l>>2) + (l&3))*4")
    i(f"v_lshlrev_b32 v{T+6}, 5, v{T}")
    i(f"v_add_u32 v{V_SCA}, {LDS_SCALE}, v{T+6}", "scale address: n*32")
    i(f"v_lshrrev_b32 v{T+6}, 4, v{V_LANE}", "line")
    i(f"v_lshlrev_b32 v{V_TRA}, 6, v{T+6}")
    i(f"v_lshl_add_u32 v{V_TRA}, v{T+5}, 4, v{V_TRA}", "transpose address: line*64 + granule*16")
    i(f"v_bfe_u32 v{T+7}, v{V_LANE}, 2, 1")
    i(f"v_lshl_add_u32 v{V_PUB}, v{T+7}, 11, v{V_TRA}")
    i(f"v_bfe_u32 v{T+7}, v{V_LANE}, 3, 1")
    i(f"v_lshl_add_u32 v{V_PUB}, v{T+7}, 13, v{V_PUB}", "publish address: + copy")
    i(f"v_lshlrev_b32 v{T+6}, 8, v{T+6}")
    i(f"v_lshl_add_u32 v{V_ATOM}, v{T}, 2, v{T+6}", "atomic address: line*256 + (l&15)*4")
    i(f"v_lshlrev_b32 v{V_L4}, 2, v{V_LANE}")
    i(f"v_mov_b32 v{V_ONE}, 1")
    i("s_mov_b32 s46, 0x88888888")
    i("s_mov_b32 s47, 0x88888888")
    i(f"s_mov_b32 s51, {f2u(float(NWG // R)):#x}", "WGs per replica, as float")
    i("s_mov_b32 s50, 0x200000", "spin budget")
    if near:
        i("s_getreg_b32 s54, hwreg(HW_REG_XCC_ID, 0, 3)")

    def sync_offsets():
        if near:
            i("s_lshr_b32 s42, s43, 1", "XCC of WG 0")
            i("s_add_u32 s42, s42, s2")
            i("s_lshr_b32 s43, s43, 2")
            i("s_xor_b32 s42, s42, s43", "bit 2: side the id is expected on ^ side of region 0")
            i("s_xor_b32 s52, s54, s43")
            i("s_bfe_u32 s42, s42, 0x10002")
            i("s_bfe_u32 s52, s52, 0x10002")
            i("s_and_b32 s53, s54, 1")
        else:
            i("s_bfe_u32 s42, s2, 0x10002")
            i("s_bfe_u32 s52, s2, 0x10001")
            i("s_and_b32 s53, s2, 1")
        i("s_bfe_u32 s43, s2, 0x10003")
        i("s_lshl_b32 s48, s42, 13")
        i("s_lshl_b32 s49, s43, 11")
        i("s_add_u32 s48, s48, s49")
        i(f"s_add_u32 s49, s48, {4*LS}")
        i("s_lshl_b32 s56, s42, 1")
        i("s_add_u32 s56, s56, s43")
        i("s_lshl_b32 s56, s56, 9")
        i("s_add_u32 s56, s56, 4096")
        i("s_add_u32 s57, s56, 256")
        i("s_lshl_b32 s52, s52, 13")
        i("s_lshl_b32 s53, s53, 11")
        i("s_add_u32 s52, s52, s53")
        i("s_add_u32 s52, s52, 4096")
        i("s_add_u32 s53, s52, 1024")

    if not near:
        sync_offsets()
    a.c("wave 0 fetches the weights (its counted waits below only get stricter)")
    i("s_cmp_lg_u32 s3, 0")
    i("s_cbranch_scc1 L_now")
    for r in range(21):
        i(f"v_mov_b32 v{V_WD+r}, 0")
    i(f"v_and_b32 v{T}, 31, v{V_LANE}")
    i(f"v_lshrrev_b32 v{T+1}, 5, v{V_LANE}")
    i(f"v_mul_u32_u24 v{T+2}, 36, v{T}")
    i(f"v_mul_u32_u24 v{T+3}, 6, v{T+1}")
    i(f"v_add_u32 v{T+2}, v{T+2}, v{T+3}")
    i(f"v_lshlrev_b32 v{T+3}, 1, v{V_LANE}")
    for ii in range(3):
        for jj in range(3):
            i(f"buffer_load_short_d16_hi v{V_WD+3*ii+jj}, v{T+2}, s[32:35], 0 offen offset:{12*ii+2*jj}")
    for j in range(6):
        for h in range(2):
            i(f"buffer_load_short_d16_hi v{V_WU+2*j+h}, v{T+3}, s[36:39], 0 offen offset:{192*j+128*h}")
    a("L_now:")
    for k in range(L):
        i(f"s_waitcnt vmcnt({L-k})")
        i(f"v_mfma_f32_16x16x32_bf16 v[{V_D}:{V_D+3}], v[{V_A}:{V_A+3}], {dreg(k)}, v[{V_D}:{V_D+3}]")
    stamp(3)
    if o.stamps:
        i("s_mov_b32 s68, 0")
        if o.x9 == "atom":
            i("s_mov_b32 s78, 0")
    S0, S1 = T, T + 1
    i("s_mov_b32 exec_lo, 0x0fff0fff")
    i("s_mov_b32 exec_hi, 0")
    i("s_waitcnt vmcnt(0)")
    i(f"v_readfirstlane_b32 s43, v{V_FLAG}")
    i("s_nop 3")
    i(f"ds_write_b128 v{V_WRA}, v[{V_D}:{V_D+3}]")
    i("s_mov_b64 exec, 1")
    i(f"ds_add_rtn_u32 v{T+7}, v{V_CNA}, v{V_ONE}")
    i("s_mov_b64 exec, -1")
    for k in range(W):
        i(f"ds_read2st64_b32 v[{Q+2*k}:{Q+2*k+1}], v{V_RDA} offset0:{LDS_SLOT//256+2*k} offset1:{LDS_SLOT//256+2*k+1}")
    i("s_cmp_eq_u32 s43, 0")
    i("s_cbranch_scc1 L_flagspin")
    a("L_flagok:")
    if near:
        sync_offsets()
    i(f"s_waitcnt lgkmcnt({W})" if not o.stamps else "s_waitcnt lgkmcnt(0)")
    i(f"v_readfirstlane_b32 s42, v{T+7}")
    i(f"s_cmp_lg_u32 s42, {W-1}")
    i("s_cbranch_scc1 L_notlast")
    a.c("last wave of the WG: the slot reads above saw every wave's sums")
    step = 1
    while step < W:
        for k in range(0, W, 2 * step):
            if step == 1:
                i(f"s_waitcnt lgkmcnt({W-2-k})")
            dst = T + 2 if step * 2 >= W else Q + 2 * k
            i(f"v_pk_add_f32 v[{dst}:{dst+1}], v[{Q+2*k}:{Q+2*k+1}], v[{Q+2*(k+step)}:{Q+2*(k+step)+1}]")
        step *= 2
    i(f"v_cndmask_b32 v{S0}, v{T+2}, 1.0, s[46:47]")
    i(f"v_cndmask_b32 v{S1}, v{T+3}, 1.0, s[46:47]")
    i(f"buffer_atomic_add_f32 v{S0}, v{V_ATOM}, s[24:27], s48 offen sc0")
    i(f"buffer_atomic_add_f32 v{S1}, v{V_ATOM}, s[24:27], s49 offen sc0")
    stamp(4)
    i(f"v_cndmask_b32 v{T+2}, v{T+2}, 1.0, s[46:47]")
    i(f"v_cndmask_b32 v{T+3}, v{T+3}, 1.0, s[46:47]")
    i("s_waitcnt vmcnt(1)")
    i(f"v_add_f32 v{T+2}, v{T+2}, v{S0}")
    i("s_waitcnt vmcnt(0)")
    i(f"v_add_f32 v{T+3}, v{T+3}, v{S1}")
    x9("atom")
    a.c("transpose through LDS: lane (line, copy, granule) gets one whole 16-byte granule")
    i(f"ds_write2st64_b32 v{V_L4}, v{T+2}, v{T+3} offset0:0 offset1:1")
    i(f"ds_read_b128 v[{P}:{P+3}], v{V_TRA}")
    i(f"ds_read_b128 v[{P+4}:{P+7}], v{V_TRA} offset:256")
    i("s_waitcnt lgkmcnt(1)" if not o.stamps else "s_waitcnt lgkmcnt(0)")
    i(f"v_cmp_eq_f32 vcc, s51, v{P+3}")
    i("s_and_b64 exec, vcc, vcc")
    i("s_cbranch_scc0 L_nopubA")
    i(f"buffer_store_dwordx4 v[{P}:{P+3}], v{V_PUB}, s[24:27], s56 offen sc1")
    a("L_nopubA:")
    i("s_mov_b64 exec, -1")
    i("s_waitcnt lgkmcnt(0)")
    i(f"v_cmp_eq_f32 vcc, s51, v{P+7}")
    i("s_and_b64 exec, vcc, vcc")
    i("s_cbranch_scc0 L_nopubB")
    i(f"buffer_store_dwordx4 v[{P+4}:{P+7}], v{V_PUB}, s[24:27], s57 offen sc1")
    a("L_nopubB:")
    i("s_mov_b64 exec, -1")
    a("L_notlast:")
    i("s_cmp_lg_u32 s3, 0")
    i("s_cbranch_scc1 L_wait1")
    i("s_mov_b32 s43, 0x36800000", "2^-18 (1/pixels) folded into w_down")
    for r in range(9):
        i(f"v_mul_f32 v{V_WD+r}, s43, v{V_WD+r}")
    i("s_mov_b32 s42, 0xbfb8aa3b", "-log2(e)")
    i("s_barrier")
    a.c("wave 0: poll the published replica sums")
    a("L_poll:")
    i(f"buffer_load_dwordx4 v[{Q}:{Q+3}], v{V_POLL}, s[24:27], s52 offen sc1")
    i(f"buffer_load_dwordx4 v[{Q+4}:{Q+7}], v{V_POLL}, s[24:27], s53 offen sc1")
    i("s_sub_u32 s50, s50, 1")
    i("s_cbranch_scc1 L_done")
    i("s_waitcnt vmcnt(1)")
    i(f"v_cmp_eq_f32 vcc, s51, v{Q+3}")
    i("s_waitcnt vmcnt(0)")
    i(f"v_cmp_eq_f32 s[4:5], s51, v{Q+7}")
    i("s_and_b64 vcc, vcc, s[4:5]")
    i("s_cmp_eq_u64 vcc, -1")
    i("s_cbranch_scc0 L_poll")
    a("L_done:")
    stamp(5)
    i(f"v_pk_add_f32 v[{P}:{P+1}], v[{Q}:{Q+1}], v[{Q+4}:{Q+5}]")
    i(f"v_pk_add_f32 v[{P+4}:{P+5}], v[{Q}:{Q+1}], v[{Q+4}:{Q+5}]")
    i(f"v_add_f32 v{P+2}, v{Q+2}, v{Q+6}")
    i(f"v_add_f32 v{P+6}, v{Q+2}, v{Q+6}")
    i(f"v_permlane32_swap_b32 v{P+4}, v{P}")
    i(f"v_permlane32_swap_b32 v{P+5}, v{P+1}")
    i(f"v_permlane32_swap_b32 v{P+6}, v{P+2}")
    i(f"v_pk_add_f32 v[{P}:{P+1}], v[{P}:{P+1}], v[{P+4}:{P+5}]")
    i(f"v_add_f32 v{P+2}, v{P+2}, v{P+6}")
    for r in range(3):
        i(f"v_cvt_pk_bf16_f32 v{P+r}, 0, v{P+r}", "sum rounded to bf16, left in the high half" if r == 0 else None)
    H = P + 4
    for jj in range(3):
        i(f"v_mul_f32 v{H+jj}, v{P}, v{V_WD+jj}")
    for ii in (1, 2):
        for jj in range(3):
            i(f"v_fmac_f32 v{H+jj}, v{P+ii}, v{V_WD+3*ii+jj}")
    for dpp in ("quad_perm:[1,0,3,2]", "quad_perm:[2,3,0,1]", "row_half_mirror", "row_mirror"):
        for jj in range(3):
            i(f"v_add_f32_dpp v{H+jj}, v{H+jj}, v{H+jj} {dpp} row_mask:0xf bank_mask:0xf")
    for jj in range(3):
        i(f"v_add_f32_dpp v{P}, v{H+jj}, v{H+jj} row_bcast:15 row_mask:0xa bank_mask:{1 << jj:#x}",
          "h[j] -> lane 16 + 4*(j%3) + 32*(j/3)" if jj == 0 else None)
    i(f"v_cvt_pk_bf16_f32 v{H}, 0, v{P}", "h (bf16)")
    i(f"v_mul_f32 v{P}, s42, v{H}")
    i(f"v_exp_f32 v{P}, v{P}")
    i("s_nop 0")
    i(f"v_add_f32 v{P}, 1.0, v{P}")
    i(f"v_rcp_f32 v{P}, v{P}")
    i("s_nop 0")
    i(f"v_mul_f32 v{H}, v{H}, v{P}")
    i(f"v_cvt_pk_bf16_f32 v{H}, 0, v{H}", "silu(h) (bf16)")
    i("s_nop 0")
    for j in range(6):
        i(f"v_readlane_b32 s{8+j}, v{H}, {16 + 4*(j % 3) + 32*(j//3)}")
    Z = P
    sel = lambda j: "op_sel:[0,1,0] op_sel_hi:[1,1,1]" if j & 1 else "op_sel:[0,0,0] op_sel_hi:[1,0,1]"
    i(f"v_pk_mul_f32 v[{Z}:{Z+1}], v[{V_WU}:{V_WU+1}], s[8:9] op_sel:[0,0] op_sel_hi:[1,0]")
    for j in range(1, 6):
        sp = 8 + (j & ~1)
        i(f"v_pk_fma_f32 v[{Z}:{Z+1}], v[{V_WU+2*j}:{V_WU+2*j+1}], s[{sp}:{sp+1}], v[{Z}:{Z+1}] {sel(j)}")
    i(f"v_cvt_pk_bf16_f32 v{Z}, 0, v{Z}", "z (bf16)")
    i(f"v_cvt_pk_bf16_f32 v{Z+1}, 0, v{Z+1}")
    i(f"v_pk_mul_f32 v[{Z}:{Z+1}], v[{Z}:{Z+1}], s[42:43] op_sel:[0,0] op_sel_hi:[1,0]")
    i(f"v_exp_f32 v{Z}, v{Z}")
    i(f"v_exp_f32 v{Z+1}, v{Z+1}")
    i("s_nop 0")
    i(f"v_pk_add_f32 v[{Z}:{Z+1}], v[{Z}:{Z+1}], 1.0 op_sel_hi:[1,0]")
    i(f"v_rcp_f32 v{Z}, v{Z}")
    i(f"v_rcp_f32 v{Z+1}, v{Z+1}")
    i(f"v_cvt_pk_bf16_f32 v{Z}, 0, v{Z}", "sigmoid (bf16)")
    i(f"v_cvt_pk_bf16_f32 v{Z+1}, 0, v{Z+1}")
    i(f"ds_write2st64_b32 v{V_L4}, v{Z}, v{Z+1} offset0:{LDS_SCALE//256} offset1:{LDS_SCALE//256+1}")
    i("s_waitcnt lgkmcnt(0)")
    a("L_wait2:")
    i("s_barrier")
    i(f"ds_read_b128 v[{V_SC}:{V_SC+3}], v{V_SCA}")
    i(f"ds_read_b128 v[{V_SC+4}:{V_SC+7}], v{V_SCA} offset:16")
    i("s_mov_b64 exec, s[44:45]")
    i("s_mov_b32 s40, s41")
    stamp(6)
    i("s_mov_b32 s43, 0xffff0000")
    for k in range(L):
        d = V_DATA + 4 * k
        for r in range(4):
            i(f"v_lshlrev_b32 v{T+2*r}, 16, v{d+r}")
            i(f"v_and_b32 v{T+2*r+1}, s43, v{d+r}")
        if k == 0:
            i("s_waitcnt lgkmcnt(0)")
        for r in range(4):
            i(f"v_pk_mul_f32 v[{T+2*r}:{T+2*r+1}], v[{T+2*r}:{T+2*r+1}], v[{V_SC+2*r}:{V_SC+2*r+1}]")
        for r in range(4):
            i(f"v_cvt_pk_bf16_f32 v{d+r}, v{T+2*r}, v{T+2*r+1}")
        mem("buffer_store_dwordx4", k, f"v[{d}:{d+3}]", "s[20:23]", stf2 if k < o.nst2 or k >= L - o.nst2e else stf)
    if o.stamps:
        stamp(7)
        i("s_waitcnt vmcnt(0)")
        stamp(8)
        i("s_memtime s[90:91]")
        i("s_mov_b64 exec, -1")
        i("s_getreg_b32 s42, hwreg(HW_REG_HW_ID)")
        i("s_getreg_b32 s43, hwreg(HW_REG_XCC_ID)")
        i("s_waitcnt lgkmcnt(0)")
        i(f"v_mov_b32 v{V_ZA}, 0")
        for k in range(nstamp[0]):
            i(f"v_writelane_b32 v{V_ZA}, s{60+2*k}, {k}")
        i(f"v_writelane_b32 v{V_ZA}, s78, 9")
        i(f"v_writelane_b32 v{V_ZA}, s92, 10")
        i(f"v_writelane_b32 v{V_ZA}, s94, 13")
        i("s_sub_u32 s90, s90, s88")
        i(f"v_writelane_b32 v{V_ZA}, s90, 11")
        i("s_sub_u32 s50, 0x200000, s50")
        i(f"v_writelane_b32 v{V_ZA}, s50, 12")
        i(f"v_writelane_b32 v{V_ZA}, s42, 14")
        i(f"v_writelane_b32 v{V_ZA}, s43, 15")
        i("s_lshl_b32 s42, s2, 4")
        i("s_add_u32 s42, s42, s3")
        i("s_lshl_b32 s42, s42, 6")
        i("s_add_u32 s42, s42, 0x4000000")
        i("s_mov_b64 exec, 0xffff")
        i(f"buffer_store_dword v{V_ZA}, v{V_L4}, s[24:27], s42 offen")
        if o.probe:
            pa, pb, pk, pw = [int(x) for x in o.probe.split(",")]
            i("s_cmp_lg_u32 s3, 0")
            i("s_cbranch_scc1 L_end")
            i(f"s_cmp_lg_u32 s2, {pw}")
            i("s_cbranch_scc1 L_end")
            i(f"s_sub_u32 s42, s{60+2*pb}, s{60+2*pa}")
            i(f"s_mul_i32 s42, s42, {pk}")
            i("s_add_u32 s42, s42, 4000")
            i("s_min_u32 s42, s42, 20000")
            a("L_probe:")
            i("s_memrealtime s[50:51]")
            i("s_waitcnt lgkmcnt(0)")
            i("s_sub_u32 s43, s50, s60")
            i("s_cmp_lt_u32 s43, s42")
            i("s_cbranch_scc1 L_probe")
    a("L_end:")
    i("s_endpgm")
    a("L_wait1:")
    i("s_barrier")
    i("s_branch L_wait2")
    a("L_flagspin:")
    a.c("rare: the zeroing-done flag was not up yet when this wave read it")
    i(f"buffer_load_dword v{V_FLAG}, off, s[28:31], 0 sc1")
    i("s_waitcnt vmcnt(0)")
    i(f"v_readfirstlane_b32 s43, v{V_FLAG}")
    i("s_sub_u32 s50, s50, 1")
    i("s_cbranch_scc1 L_flagok")
    i("s_cmp_eq_u32 s43, 0")
    i("s_cbranch_scc1 L_flagspin")
    i("s_branch L_flagok")
    a("L_zero:")
    a.c("WG 0: every wave zeroes 2 KiB of the 16 KiB hand-off area")
    if o.minpro:
        i("s_mov_b64 s[44:45], exec")
        i("s_mov_b32 s26, 0x10000000")
        i("s_mov_b32 s27, 0x00020000")
    i("s_mov_b64 exec, -1")
    if o.minpro:
        i(f"v_and_b32 v{V_LANE}, 63, v0")
        i(f"v_mov_b32 v{P}, 0")
        i(f"v_lshlrev_b32 v{V_POLL}, 4, v{V_LANE}")
    for r in range(1, 4):
        i(f"v_mov_b32 v{P+r}, 0")
    if near:
        i(f"s_cmp_lg_u32 s3, {o.flagwave}")
        i("s_cbranch_scc1 L_zero2")
        i("s_load_dword s6, s[24:25], 16384 glc", "first touch of the two lines timed below")
        i("s_load_dword s7, s[24:25], 24576 glc")
        a("L_zero2:")
    i("s_lshl_b32 s42, s3, 11")
    i(f"buffer_store_dwordx4 v[{P}:{P+3}], v{V_POLL}, s[24:27], s42 offen sc1")
    i(f"buffer_store_dwordx4 v[{P}:{P+3}], v{V_POLL}, s[24:27], s42 offen offset:1024 sc1")
    i("s_mov_b64 exec, s[44:45]")
    i("s_branch L_loads")
    a("L_flag:")
    a.c("WG 0: zero stores acknowledged in every wave, then one wave raises the flag")
    i(f"s_waitcnt vmcnt({o.bar0 + 1})")
    i("s_barrier")
    i(f"s_cmp_lg_u32 s3, {o.flagwave}")
    i("s_cbranch_scc1 L_loads2")
    if near:
        a.c("which of the two 8 KiB regions is closer to this die (speed only): timed uncached scalar reads")
        i("s_mov_b32 s4, -1")
        i("s_mov_b32 s5, -1")
        i("s_waitcnt lgkmcnt(0)")
        for r in range(o.near):
            for h in range(2):
                i("s_memtime s[8:9]")
                i("s_waitcnt lgkmcnt(0)")
                i(f"s_load_dword s6, s[24:25], {16384 + 8192*h} glc")
                i("s_waitcnt lgkmcnt(0)")
                i("s_memtime s[10:11]")
                i("s_waitcnt lgkmcnt(0)")
                i("s_sub_u32 s10, s10, s8")
                i(f"s_min_u32 s{4+h}, s{4+h}, s10")
        if o.stamps:
            i("s_lshl_b32 s92, s5, 16")
            i("s_or_b32 s92, s92, s4")
            i("s_memrealtime s[94:95]")
        i("s_getreg_b32 s6, hwreg(HW_REG_XCC_ID, 0, 3)")
        i("s_cmp_lt_u32 s4, s5")
        i("s_cselect_b32 s4, 0, 4")
        i("s_xor_b32 s4, s4, s6")
        i("s_and_b32 s4, s4, 4", "bit 2: side of region 0")
        i("s_lshl_b32 s4, s4, 2")
        i("s_lshl_b32 s6, s6, 1")
        i("s_or_b32 s4, s4, s6")
        i("s_or_b32 s4, s4, 1", "flag = 1 | XCC << 1 | side << 4")
        i(f"v_mov_b32 v{T+4}, s4")
    else:
        i(f"v_mov_b32 v{T+4}, 1")
    i("s_mov_b64 exec, 1")
    i(f"buffer_store_dword v{T+4}, off, s[28:31], 0 sc1")
    i("s_mov_b64 exec, s[44:45]")
    i("s_branch L_loads2")
    a(f""".section .rodata,"a"
.p2align 6
.amdhsa_kernel {KNAME}
  .amdhsa_next_free_vgpr {NV}
  .amdhsa_next_free_sgpr {96 if o.stamps else 64}
  .amdhsa_accum_offset {(NV + 3) // 4 * 4}
  .amdhsa_group_segment_fixed_size 0
  .amdhsa_kernarg_size 48
  .amdhsa_user_sgpr_count 2
  .amdhsa_user_sgpr_kernarg_segment_ptr 1
  .amdhsa_system_sgpr_workgroup_id_x 1
  .amdhsa_float_denorm_mode_32 3
.end_amdhsa_kernel""")
    return a.text()


def main():
    ap = argparse.ArgumentParser()
    ap.add_argument("-o", default="-")
    ap.add_argument("--xcdswz", type=int, default=2)
    ap.add_argument("--bar0", type=int, default=5)
    ap.add_argument("--minpro", type=int, default=1)
    ap.add_argument("--near", type=int, default=0)
    ap.add_argument("--flagwave", type=int, default=7)
    ap.add_argument("--ldflags", default="nt")
    ap.add_argument("--stflags", default="nt")
    ap.add_argument("--stflags2", default="nt+sc1")
    ap.add_argument("--nst2", type=int, default=4)
    ap.add_argument("--nst2e", type=int, default=0)
    ap.add_argument("--stamps", type=int, default=0)
    ap.add_argument("--probe", default="")
    ap.add_argument("--x9", default="")
    o = ap.parse_args()
    t = gen(o)
    if o.o == "-":
        sys.stdout.write(t)
    else:
        open(o.o, "w").write(t)


if __name__ == "__main__":
    main()
```

```python
import argparse
import struct
import sys

XBYTES = 512 * 512 * 96 * 2
NWG = 256
KNAME = "standalone__se_block__vision_kernel"

HEADER = """; Kernarg layout for this problem (48 bytes, ptrs only, base s[0:1]):
;
;  2. wave 0 adds the WG sums to one of 4 replicas in d_ws with returning float atomics on
;     16-byte granules {3 sums, count}; the WG that sees the final count publishes the granule
"""


def f2u(x):
    return struct.unpack("<I", struct.pack("<f", x))[0]


class Asm:
    def __init__(self):
        self.l = []

    def __call__(self, s):
        for line in s.strip("\n").split("\n"):
            self.l.append(line)

    def i(self, s, c=None):
        self.l.append("    " + s + (f"    ; {c}" if c else ""))

    def c(self, s):
        self.l.append("    ; " + s)

    def text(self):
        return "\n".join(self.l) + "\n"


def gen(o):
    W, L, UNIT, R, LS = 8, 32, 768, 4, 256
    near = o.near
    a = Asm()
    i = a.i
    LDS_TR, LDS_SCALE, LDS_SLOT = 0, 512, 1024
    lds = LDS_SLOT + W * 512
    a(HEADER)
    a(f"; @launch grid=({NWG},1,1) block=({W*64},1,1) lds={lds}")
    a(f""".amdgcn_target "amdgcn-amd-amdhsa--gfx950"
.text
.globl {KNAME}
.p2align 12
.p2align 8
.type {KNAME},@function
{KNAME}:""")

    V_OFF, V_A, V_D, V_LANE, V_POLL, V_ATOM, V_FLAG, V_L4, V_SCA = 1, 2, 6, 10, 11, 12, 13, 14, 15
    V_WRA, V_RDA, V_TRA, V_PUB, V_T, V_ZA, V_WD, V_WU, V_SC, V_Q, V_DATA = 16, 17, 18, 19, 20, 30, 31, 40, 52, 60, 76
    NV = V_DATA + 4 * L
    dreg = lambda k: f"v[{V_DATA+4*k}:{V_DATA+4*k+3}]"
    T, P, Q = V_T, V_SC, V_Q

    nstamp = [0]

    def stamp(k):
        if o.stamps:
            nstamp[0] = max(nstamp[0], k + 1)
            i(f"s_memrealtime s[{60+2*k}:{61+2*k}]")

    def x9(tag):
        if o.x9 == tag:
            i("s_memrealtime s[78:79]")

    ldf = o.ldflags.replace("+", " ")
    stf = o.stflags.replace("+", " ")
    stf2 = o.stflags2.replace("+", " ")
    u_stride = NWG * W * UNIT

    def mem(op, k, reg, srd, flags):
        i(f"{op} {reg}, v{V_OFF}, {srd}, s40 offen {flags}".rstrip())
        if k != L - 1:
            i("s_add_u32 s40, s40, s55")

    def pad(name, target):
        if o.pads:
            a(f"{name}:")
            i(f"s_cbranch_execz {target}", "landing pad of the instruction-cache warm-up hops (EXEC = 0 only there)")

    stamp(0)
    if o.stamps:
        i("s_memtime s[88:89]")
    i("s_load_dwordx2 s[16:17], s[0:1], 0", "x")
    i("s_load_dwordx2 s[24:25], s[0:1], 40", "ws")
    i(f"v_lshrrev_b32 v{T}, 6, v0")
    i(f"v_and_b32 v{T+1}, 15, v0", "n = 16-byte chunk of the pixel (12 used)")
    i(f"v_readfirstlane_b32 s3, v{T}", "wave id")
    i(f"v_bfe_u32 v{T+2}, v0, 4, 2", "q = pixel of the 4")
    i(f"s_cmp_ge_u32 s2, {NWG}")
    i("s_cbranch_scc1 L_exit", "workgroups past the data exit")
    i(f"v_mul_u32_u24 v{V_OFF}, 192, v{T+2}")
    i(f"v_lshl_add_u32 v{V_OFF}, v{T+1}, 4, v{V_OFF}")
    if o.pads & 1:
        a.c("waves 6 and 7 touch the code further down while the kernarg loads are under way")
        i("s_cmp_lt_u32 s3, 6")
        i("s_cbranch_scc1 L_back1")
        i("s_mov_b64 exec, 0")
        i("s_cmp_eq_u32 s3, 6")
        i("s_cbranch_scc1 L_padA")
        i("s_branch L_padB")
        a("L_back1:")
    if o.xcdswz == 2:
        a.c("WGs with equal id mod 8 get neighbouring 6 KiB pieces (speed only)")
        i("s_and_b32 s42, s2, 7")
        i("s_bfe_u32 s43, s2, 0x10003")
        i("s_lshl1_add_u32 s42, s42, s43")
        i("s_andn2_b32 s43, s2, 15")
        i("s_or_b32 s42, s42, s43")
        i("s_lshl3_add_u32 s41, s42, s3")
    else:
        i("s_lshl3_add_u32 s41, s2, s3")
    i(f"s_mulk_i32 s41, {UNIT}")
    i(f"s_mov_b32 s18, {XBYTES}")
    i("s_mov_b32 s19, 0x00020000")
    i(f"s_mov_b32 s55, {u_stride}")
    i("s_mov_b32 exec_lo, 0x0fff0fff")
    i("s_mov_b32 s40, s41")
    i("s_mov_b32 exec_hi, exec_lo")
    i("s_or_b32 s42, s2, s3")
    i("s_waitcnt lgkmcnt(0)")
    i("s_cbranch_scc0 L_zero")
    a("L_loads:")
    stamp(1)
    for k in range(L):
        mem("buffer_load_dwordx4", k, dreg(k), "s[16:19]", ldf)
        if o.x9 == f"f{k}":
            i(f"s_waitcnt vmcnt({k})")
            i("s_memrealtime s[78:79]")
    stamp(2)
    i("s_load_dwordx2 s[20:21], s[0:1], 24", "out")
    i("s_load_dwordx2 s[28:29], s[0:1], 32", "debug")
    i("s_mov_b32 s26, 0x10000000")
    i("s_mov_b32 s27, 0x00020000")
    i("s_movk_i32 s30, 256")
    i("s_mov_b32 s31, 0x00020000")
    i("s_mov_b64 s[44:45], exec")
    i("s_mov_b64 exec, -1")
    i("s_mov_b32 s22, s18")
    i("s_mov_b32 s23, 0x00020000")
    i(f"v_and_b32 v{V_LANE}, 63, v0")
    i(f"v_and_b32 v{T}, 15, v0", "A[i][k] = 1 where k%8 == i (i<8): sums the 4 pixels per channel")
    i(f"v_and_b32 v{T+1}, 1, v0")
    i(f"v_lshlrev_b32 v{T+1}, 4, v{T+1}")
    i(f"v_mov_b32 v{T+2}, 0x3f80")
    i(f"v_lshlrev_b32 v{T+1}, v{T+1}, v{T+2}")
    i(f"v_lshrrev_b32 v{T+2}, 1, v{T}")
    for r in range(4):
        i(f"v_cmp_eq_u32 vcc, {r}, v{T+2}")
        i(f"v_mov_b32 v{V_D+r}, 0")
        i("s_nop 0")
        i(f"v_cndmask_b32 v{V_A+r}, 0, v{T+1}, vcc")
    a.c("slot write address: wave*512 + (n/6)*256 + (n%6)*32 + (u&1)*16")
    i(f"v_bfe_u32 v{T+3}, v0, 4, 1")
    i(f"v_lshlrev_b32 v{T+3}, 4, v{T+3}")
    i("s_lshl_b32 s42, s3, 9")
    i(f"s_addk_i32 s42, {LDS_SLOT}")
    i(f"v_add_u32 v{T+3}, s42, v{T+3}")
    i(f"v_mul_u32_u24 v{T+5}, 43, v{T}")
    i(f"v_lshrrev_b32 v{T+5}, 8, v{T+5}")
    i(f"v_mul_u32_u24 v{T+6}, 6, v{T+5}")
    i(f"v_sub_u32 v{T+6}, v{T}, v{T+6}")
    i(f"v_lshl_add_u32 v{V_WRA}, v{T+5}, 8, v{T+3}")
    i(f"v_lshl_add_u32 v{V_WRA}, v{T+6}, 5, v{V_WRA}")
    i(f"v_lshlrev_b32 v{T+6}, 5, v{T}")
    i(f"v_add_u32 v{V_SCA}, {LDS_SCALE}, v{T+6}", "scale address: n*32")
    i(f"v_lshlrev_b32 v{V_L4}, 2, v{V_LANE}")
    i(f"v_lshlrev_b32 v{V_POLL}, 4, v{V_LANE}")
    i(f"v_lshrrev_b32 v{T+4}, 2, v{V_LANE}")
    i(f"v_and_b32 v{T+5}, 3, v{V_LANE}")
    i(f"v_mul_u32_u24 v{V_RDA}, 3, v{T+4}")
    i(f"v_add_lshl_u32 v{V_RDA}, v{V_RDA}, v{T+5}, 2", "slot read address: (3*(l>>2) + (l&3))*4")
    i(f"v_lshrrev_b32 v{T+6}, 4, v{V_LANE}", "line")
    i(f"v_lshlrev_b32 v{V_TRA}, 6, v{T+6}")
    i(f"v_lshl_add_u32 v{V_TRA}, v{T+5}, 4, v{V_TRA}", "transpose address: line*64 + granule*16")
    i(f"v_bfe_u32 v{T+7}, v{V_LANE}, 2, 1")
    i(f"v_lshl_add_u32 v{V_PUB}, v{T+7}, 11, v{V_TRA}")
    i(f"v_bfe_u32 v{T+7}, v{V_LANE}, 3, 1")
    i(f"v_lshl_add_u32 v{V_PUB}, v{T+7}, 13, v{V_PUB}", "publish address: + copy")
    i(f"v_lshlrev_b32 v{T+6}, 8, v{T+6}")
    i(f"v_lshl_add_u32 v{V_ATOM}, v{T}, 2, v{T+6}", "atomic address: line*256 + (l&15)*4")
    i("s_cmp_eq_u32 s3, 0")
    i("s_cbranch_scc1 L_ctl")
    if o.pads & 2:
        a.c("waves 1-3 touch the store code while their loads fly")
        i("s_cmp_gt_u32 s3, 3")
        i("s_cbranch_scc1 L_now")
        i("s_mov_b64 exec, 0")
        i("s_cmp_eq_u32 s3, 2")
        i("s_cbranch_scc1 L_padD")
        i("s_cmp_eq_u32 s3, 3")
        i("s_cbranch_scc1 L_padE")
        i("s_branch L_padC")
        a("L_back2:")
        i("s_mov_b64 exec, -1")
    i("s_branch L_now")
    a("L_exit:")
    i("s_endpgm")
    a("L_ctl:")
    a.c("wave 0: weights, flag and hand-off addresses (the extra loads only make its counted waits stricter)")
    i("s_load_dwordx4 s[4:7], s[0:1], 8", "w_down, w_up")
    i("s_movk_i32 s34, 1152")
    i("s_mov_b32 s35, 0x00020000")
    i("s_movk_i32 s38, 1152")
    i("s_mov_b32 s39, 0x00020000")
    for r in range(21):
        i(f"v_mov_b32 v{V_WD+r}, 0")
    i(f"v_and_b32 v{T+1}, 31, v0")
    i(f"v_lshrrev_b32 v{T+4}, 5, v0")
    i(f"v_mul_u32_u24 v{T+2}, 36, v{T+1}")
    i(f"v_mad_u32_u24 v{T+2}, v{T+4}, 6, v{T+2}")
    i(f"v_lshlrev_b32 v{T+3}, 1, v0")
    i("s_waitcnt lgkmcnt(0)")
    i("s_mov_b64 s[32:33], s[4:5]")
    i("s_mov_b64 s[36:37], s[6:7]")
    pad("L_padA", "L_back1") if o.pads & 1 else None
    for ii in range(3):
        for jj in range(3):
            i(f"buffer_load_short_d16_hi v{V_WD+3*ii+jj}, v{T+2}, s[32:35], 0 offen offset:{12*ii+2*jj}")
    for j in range(6):
        for h in range(2):
            i(f"buffer_load_short_d16_hi v{V_WU+2*j+h}, v{T+3}, s[36:39], 0 offen offset:{192*j+128*h}")
    i("s_mov_b64 exec, 1")
    i(f"buffer_load_dword v{V_FLAG}, off, s[28:31], 0 sc1", "zeroing-done flag")
    i("s_mov_b64 exec, -1")
    i("s_mov_b32 s46, 0x88888888")
    i("s_mov_b32 s47, s46")
    i(f"s_mov_b32 s51, {f2u(float(NWG // R)):#x}", "WGs per replica, as float")
    i("s_mov_b32 s50, 0x200000", "spin budget")
    a("L_now:")
    for k in range(L):
        if k % o.wgrp == 0:
            i(f"s_waitcnt vmcnt({L - k - o.wgrp})")
        i(f"v_mfma_f32_16x16x32_bf16 v[{V_D}:{V_D+3}], v[{V_A}:{V_A+3}], {dreg(k)}, v[{V_D}:{V_D+3}]")
    stamp(3)
    if o.stamps:
        i("s_mov_b32 s68, 0")
        if o.x9 == "atom":
            i("s_mov_b32 s78, 0")
    i("s_mov_b32 exec_lo, 0x0fff0fff")
    i("s_mov_b32 exec_hi, 0")
    i("s_cmp_lg_u32 s3, 0")
    i("s_nop 4")
    i(f"ds_write_b128 v{V_WRA}, v[{V_D}:{V_D+3}]")
    i("s_mov_b64 exec, -1")
    i("s_cbranch_scc0 L_ctl2")
    i("s_waitcnt lgkmcnt(0)")
    i("s_barrier")
    i("s_branch L_wait2")
    a("L_flagspin:")
    a.c("the zeroing-done flag was not up yet when this wave read it")
    i(f"buffer_load_dword v{V_FLAG}, off, s[28:31], 0 sc1")
    i("s_sub_u32 s50, s50, 1")
    i("s_cbranch_scc1 L_flagok")
    i("s_waitcnt vmcnt(0)")
    a("L_ctl2:")
    i(f"v_readfirstlane_b32 s43, v{V_FLAG}")
    i("s_cmp_eq_u32 s43, 0")
    i("s_cbranch_scc1 L_flagspin")
    a("L_flagok:")
    pad("L_padB", "L_back1") if o.pads & 1 else None
    a.c("replica = 2*q + bit 3 of the id; q depends on the id and the flag word only, so it holds 64 WGs")
    if near:
        i("s_getreg_b32 s54, hwreg(HW_REG_XCC_ID, 0, 3)")
        i("s_lshr_b32 s42, s43, 1", "XCC of WG 0")
        i("s_add_u32 s42, s42, s2")
        i("s_lshr_b32 s43, s43, 2")
        i("s_xor_b32 s42, s42, s43", "bit 2: side the id is expected on ^ side of region 0")
        i("s_xor_b32 s52, s54, s43")
        i("s_bfe_u32 s42, s42, 0x10002")
        i("s_bfe_u32 s52, s52, 0x10002")
        i("s_and_b32 s53, s54, 1")
    else:
        i("s_bfe_u32 s42, s2, 0x10002")
        i("s_bfe_u32 s52, s2, 0x10001")
        i("s_and_b32 s53, s2, 1")
    i("s_bfe_u32 s43, s2, 0x10003")
    i("s_lshl2_add_u32 s48, s42, s43")
    i("s_lshl_b32 s48, s48, 11", "accumulators: q*8192 + sub*2048")
    i(f"s_add_u32 s49, s48, {4*LS}")
    i("s_lshl1_add_u32 s56, s42, s43")
    i("s_lshl_b32 s56, s56, 9")
    i("s_addk_i32 s56, 4096", "published line: 4096 + replica*512 (+ copy)")
    i("s_add_u32 s57, s56, 256")
    i("s_lshl2_add_u32 s52, s52, s53")
    i("s_lshl_b32 s52, s52, 11")
    i("s_addk_i32 s52, 4096", "polled copy: q*8192 + 4096 + sub*2048")
    i("s_add_u32 s53, s52, 1024")
    i("s_mov_b32 s43, 0x36800000", "2^-18 (1/pixels) folded into w_down")
    for r in range(9):
        i(f"v_mul_f32 v{V_WD+r}, s43, v{V_WD+r}")
    i("s_mov_b32 s42, 0xbfb8aa3b", "-log2(e)")
    i("s_waitcnt lgkmcnt(0)")
    i("s_barrier")
    for k in range(W):
        i(f"ds_read2st64_b32 v[{Q+2*k}:{Q+2*k+1}], v{V_RDA} offset0:{LDS_SLOT//256+2*k} offset1:{LDS_SLOT//256+2*k+1}")
    S0, S1 = T, T + 1
    step = 1
    while step < W:
        for k in range(0, W, 2 * step):
            if step == 1:
                i(f"s_waitcnt lgkmcnt({W-2-k})")
            dst = T + 2 if step * 2 >= W else Q + 2 * k
            i(f"v_pk_add_f32 v[{dst}:{dst+1}], v[{Q+2*k}:{Q+2*k+1}], v[{Q+2*(k+step)}:{Q+2*(k+step)+1}]")
        step *= 2
    i(f"v_cndmask_b32 v{S0}, v{T+2}, 1.0, s[46:47]")
    i(f"v_cndmask_b32 v{S1}, v{T+3}, 1.0, s[46:47]")
    i(f"buffer_atomic_add_f32 v{S0}, v{V_ATOM}, s[24:27], s48 offen sc0")
    i(f"buffer_atomic_add_f32 v{S1}, v{V_ATOM}, s[24:27], s49 offen sc0")
    stamp(4)
    i(f"v_cndmask_b32 v{T+2}, v{T+2}, 1.0, s[46:47]")
    i(f"v_cndmask_b32 v{T+3}, v{T+3}, 1.0, s[46:47]")
    i("s_waitcnt vmcnt(1)")
    i(f"v_add_f32 v{T+2}, v{T+2}, v{S0}")
    i("s_waitcnt vmcnt(0)")
    i(f"v_add_f32 v{T+3}, v{T+3}, v{S1}")
    x9("atom")
    a.c("transpose through LDS: lane (line, copy, granule) gets one whole 16-byte granule")
    i(f"ds_write2st64_b32 v{V_L4}, v{T+2}, v{T+3} offset0:0 offset1:1")
    i(f"ds_read_b128 v[{P}:{P+3}], v{V_TRA}")
    i(f"ds_read_b128 v[{P+4}:{P+7}], v{V_TRA} offset:256")
    i("s_waitcnt lgkmcnt(1)" if not o.stamps else "s_waitcnt lgkmcnt(0)")
    i(f"v_cmp_eq_f32 vcc, s51, v{P+3}")
    i("s_and_b64 exec, vcc, vcc")
    i("s_cbranch_scc0 L_nopubA")
    i(f"buffer_store_dwordx4 v[{P}:{P+3}], v{V_PUB}, s[24:27], s56 offen sc1")
    a("L_nopubA:")
    i("s_mov_b64 exec, -1")
    i("s_waitcnt lgkmcnt(0)")
    i(f"v_cmp_eq_f32 vcc, s51, v{P+7}")
    i("s_and_b64 exec, vcc, vcc")
    i("s_cbranch_scc0 L_nopubB")
    i(f"buffer_store_dwordx4 v[{P+4}:{P+7}], v{V_PUB}, s[24:27], s57 offen sc1")
    a("L_nopubB:")
    i("s_mov_b64 exec, -1")
    a.c("poll the published replica sums")
    a("L_poll:")
    i(f"buffer_load_dwordx4 v[{Q}:{Q+3}], v{V_POLL}, s[24:27], s52 offen sc1")
    i(f"buffer_load_dwordx4 v[{Q+4}:{Q+7}], v{V_POLL}, s[24:27], s53 offen sc1")
    i("s_sub_u32 s50, s50, 1")
    i("s_cbranch_scc1 L_done")
    i("s_waitcnt vmcnt(1)")
    i(f"v_cmp_eq_f32 vcc, s51, v{Q+3}")
    i("s_waitcnt vmcnt(0)")
    i(f"v_cmp_eq_f32 s[4:5], s51, v{Q+7}")
    i("s_and_b64 vcc, vcc, s[4:5]")
    i("s_cmp_eq_u64 vcc, -1")
    i("s_cbranch_scc0 L_poll")
    a("L_done:")
    stamp(5)
    i(f"v_pk_add_f32 v[{P}:{P+1}], v[{Q}:{Q+1}], v[{Q+4}:{Q+5}]")
    i(f"v_pk_add_f32 v[{P+4}:{P+5}], v[{Q}:{Q+1}], v[{Q+4}:{Q+5}]")
    i(f"v_add_f32 v{P+2}, v{Q+2}, v{Q+6}")
    i(f"v_add_f32 v{P+6}, v{Q+2}, v{Q+6}")
    i(f"v_permlane32_swap_b32 v{P+4}, v{P}")
    i(f"v_permlane32_swap_b32 v{P+5}, v{P+1}")
    i(f"v_permlane32_swap_b32 v{P+6}, v{P+2}")
    i(f"v_pk_add_f32 v[{P}:{P+1}], v[{P}:{P+1}], v[{P+4}:{P+5}]")
    i(f"v_add_f32 v{P+2}, v{P+2}, v{P+6}")
    for r in range(3):
        i(f"v_cvt_pk_bf16_f32 v{P+r}, 0, v{P+r}", "sum rounded to bf16, left in the high half" if r == 0 else None)
    H = P + 4
    for jj in range(3):
        i(f"v_mul_f32 v{H+jj}, v{P}, v{V_WD+jj}")
    for ii in (1, 2):
        for jj in range(3):
            i(f"v_fmac_f32 v{H+jj}, v{P+ii}, v{V_WD+3*ii+jj}")
    for dpp in ("quad_perm:[1,0,3,2]", "quad_perm:[2,3,0,1]", "row_half_mirror", "row_mirror"):
        for jj in range(3):
            i(f"v_add_f32_dpp v{H+jj}, v{H+jj}, v{H+jj} {dpp} row_mask:0xf bank_mask:0xf")
    for jj in range(3):
        i(f"v_add_f32_dpp v{P}, v{H+jj}, v{H+jj} row_bcast:15 row_mask:0xa bank_mask:{1 << jj:#x}",
          "h[j] -> lane 16 + 4*(j%3) + 32*(j/3)" if jj == 0 else None)
    i(f"v_cvt_pk_bf16_f32 v{H}, 0, v{P}", "h (bf16)")
    i(f"v_mul_f32 v{P}, s42, v{H}")
    i(f"v_exp_f32 v{P}, v{P}")
    i("s_nop 0")
    i(f"v_add_f32 v{P}, 1.0, v{P}")
    i(f"v_rcp_f32 v{P}, v{P}")
    i("s_nop 0")
    i(f"v_mul_f32 v{H}, v{H}, v{P}")
    i(f"v_cvt_pk_bf16_f32 v{H}, 0, v{H}", "silu(h) (bf16)")
    i("s_nop 0")
    for j in range(6):
        i(f"v_readlane_b32 s{8+j}, v{H}, {16 + 4*(j % 3) + 32*(j//3)}")
    Z = P
    sel = lambda j: "op_sel:[0,1,0] op_sel_hi:[1,1,1]" if j & 1 else "op_sel:[0,0,0] op_sel_hi:[1,0,1]"
    i(f"v_pk_mul_f32 v[{Z}:{Z+1}], v[{V_WU}:{V_WU+1}], s[8:9] op_sel:[0,0] op_sel_hi:[1,0]")
    for j in range(1, 6):
        sp = 8 + (j & ~1)
        i(f"v_pk_fma_f32 v[{Z}:{Z+1}], v[{V_WU+2*j}:{V_WU+2*j+1}], s[{sp}:{sp+1}], v[{Z}:{Z+1}] {sel(j)}")
    i(f"v_cvt_pk_bf16_f32 v{Z}, 0, v{Z}", "z (bf16)")
    i(f"v_cvt_pk_bf16_f32 v{Z+1}, 0, v{Z+1}")
    i(f"v_pk_mul_f32 v[{Z}:{Z+1}], v[{Z}:{Z+1}], s[42:43] op_sel:[0,0] op_sel_hi:[1,0]")
    i(f"v_exp_f32 v{Z}, v{Z}")
    i(f"v_exp_f32 v{Z+1}, v{Z+1}")
    i("s_nop 0")
    i(f"v_pk_add_f32 v[{Z}:{Z+1}], v[{Z}:{Z+1}], 1.0 op_sel_hi:[1,0]")
    i(f"v_rcp_f32 v{Z}, v{Z}")
    i(f"v_rcp_f32 v{Z+1}, v{Z+1}")
    i(f"v_cvt_pk_bf16_f32 v{Z}, 0, v{Z}", "sigmoid (bf16)")
    i(f"v_cvt_pk_bf16_f32 v{Z+1}, 0, v{Z+1}")
    i(f"ds_write2st64_b32 v{V_L4}, v{Z}, v{Z+1} offset0:{LDS_SCALE//256} offset1:{LDS_SCALE//256+1}")
    i("s_waitcnt lgkmcnt(0)")
    i("s_barrier")
    i("s_branch L_go")
    a("L_zero:")
    a.c("WG 0, wave 0: zero the 16 KiB hand-off area, then raise the flag")
    i("s_load_dwordx2 s[28:29], s[0:1], 32", "debug")
    if near:
        i("s_load_dword s6, s[24:25], 16384 glc", "first touch of the two lines timed below")
        i("s_load_dword s7, s[24:25], 24576 glc")
    i("s_mov_b32 s26, 0x10000000")
    i("s_mov_b32 s27, 0x00020000")
    i("s_movk_i32 s30, 256")
    i("s_mov_b32 s31, 0x00020000")
    i("s_mov_b64 s[44:45], exec")
    i("s_mov_b64 exec, -1")
    i(f"v_lshlrev_b32 v{V_POLL}, 4, v0")
    for r in range(4):
        i(f"v_mov_b32 v{P+r}, 0")
    i("s_mov_b32 s42, 0")
    a("L_zloop:")
    for j in range(4):
        off = f" offset:{1024*j}" if j else ""
        i(f"buffer_store_dwordx4 v[{P}:{P+3}], v{V_POLL}, s[24:27], s42 offen{off} sc1")
    i("s_addk_i32 s42, 4096")
    i("s_cmpk_lt_u32 s42, 16384")
    i("s_cbranch_scc1 L_zloop")
    i("s_waitcnt lgkmcnt(0)")
    if near:
        a.c("which of the two 8 KiB regions is closer to this die (speed only): timed uncached scalar reads")
        for h in range(2):
            i("s_memtime s[8:9]")
            i("s_waitcnt lgkmcnt(0)")
            i(f"s_load_dword s6, s[24:25], {16384 + 8192*h} glc")
            i("s_waitcnt lgkmcnt(0)")
            i("s_memtime s[10:11]")
            i("s_waitcnt lgkmcnt(0)")
            i(f"s_sub_u32 s{4+h}, s10, s8")
        if o.stamps:
            i("s_lshl_b32 s92, s5, 16")
            i("s_or_b32 s92, s92, s4")
        i("s_getreg_b32 s6, hwreg(HW_REG_XCC_ID, 0, 3)")
        i("s_cmp_lt_u32 s4, s5")
        i("s_cselect_b32 s4, 0, 4")
        i("s_xor_b32 s4, s4, s6")
        i("s_and_b32 s4, s4, 4", "bit 2: side of region 0")
        i("s_lshl1_add_u32 s4, s4, s6")
        i("s_lshl1_add_u32 s4, s4, 1", "flag = 1 | XCC << 1 | side << 4")
        i(f"v_mov_b32 v{T+4}, s4")
    else:
        i(f"v_mov_b32 v{T+4}, 1")
    i("s_mov_b64 exec, 1")
    i("s_waitcnt vmcnt(0)")
    i(f"buffer_store_dword v{T+4}, off, s[28:31], 0 sc1")
    if o.stamps:
        i("s_memrealtime s[94:95]")
    i("s_mov_b64 exec, s[44:45]")
    i("s_branch L_loads")
    if o.split:
        a(".p2align 12")
    a("L_wait2:")
    pad("L_padC", "L_padF") if o.pads & 2 else None
    i("s_barrier")
    a("L_go:")
    i(f"ds_read_b128 v[{V_SC}:{V_SC+3}], v{V_SCA}")
    i(f"ds_read_b128 v[{V_SC+4}:{V_SC+7}], v{V_SCA} offset:16")
    i("s_mov_b64 exec, s[44:45]")
    i("s_mov_b32 s40, s41")
    stamp(6)
    i("s_mov_b32 s43, 0xffff0000")
    for k in range(L):
        d = V_DATA + 4 * k
        for r in range(4):
            i(f"v_lshlrev_b32 v{T+2*r}, 16, v{d+r}")
            i(f"v_and_b32 v{T+2*r+1}, s43, v{d+r}")
        if k == 0:
            i("s_waitcnt lgkmcnt(0)")
        for r in range(4):
            i(f"v_pk_mul_f32 v[{T+2*r}:{T+2*r+1}], v[{T+2*r}:{T+2*r+1}], v[{V_SC+2*r}:{V_SC+2*r+1}]")
        for r in range(4):
            i(f"v_cvt_pk_bf16_f32 v{d+r}, v{T+2*r}, v{T+2*r+1}")
        mem("buffer_store_dwordx4", k, f"v[{d}:{d+3}]", "s[20:23]", stf2 if k < o.nst2 or k >= L - o.nst2e else stf)
        if o.pads & 2 and k in (8, 17, 26):
            pad({8: "L_padD", 17: "L_padE", 26: "L_padF"}[k], "L_back2")
        if o.sbar and k % o.sbar == o.sbar - 1 and k != L - 1:
            i("s_barrier")
    if o.stamps:
        stamp(7)
        i("s_waitcnt vmcnt(0)")
        stamp(8)
        i("s_memtime s[90:91]")
        i("s_mov_b64 exec, -1")
        i("s_getreg_b32 s42, hwreg(HW_REG_HW_ID)")
        i("s_getreg_b32 s43, hwreg(HW_REG_XCC_ID)")
        i("s_waitcnt lgkmcnt(0)")
        i(f"v_mov_b32 v{V_ZA}, 0")
        for k in range(nstamp[0]):
            i(f"v_writelane_b32 v{V_ZA}, s{60+2*k}, {k}")
        i(f"v_writelane_b32 v{V_ZA}, s78, 9")
        i(f"v_writelane_b32 v{V_ZA}, s92, 10")
        i(f"v_writelane_b32 v{V_ZA}, s94, 13")
        i("s_sub_u32 s90, s90, s88")
        i(f"v_writelane_b32 v{V_ZA}, s90, 11")
        i("s_sub_u32 s50, 0x200000, s50")
        i(f"v_writelane_b32 v{V_ZA}, s50, 12")
        i(f"v_writelane_b32 v{V_ZA}, s42, 14")
        i(f"v_writelane_b32 v{V_ZA}, s43, 15")
        i("s_lshl_b32 s42, s2, 4")
        i("s_add_u32 s42, s42, s3")
        i("s_lshl_b32 s42, s42, 6")
        i("s_add_u32 s42, s42, 0x4000000")
        i("s_mov_b64 exec, 0xffff")
        i(f"buffer_store_dword v{V_ZA}, v{V_L4}, s[24:27], s42 offen")
        if o.probe:
            pa, pb, pk, pw = [int(x) for x in o.probe.split(",")]
            i(f"s_cmp_lg_u32 s3, {o.probewave}")
            i("s_cbranch_scc1 L_end")
            i(f"s_cmp_lg_u32 s2, {pw}")
            i("s_cbranch_scc1 L_end")
            i(f"s_sub_u32 s42, s{60+2*pb}, s{60+2*pa}")
            i(f"s_mul_i32 s42, s42, {pk}")
            i("s_add_u32 s42, s42, 4000")
            i("s_min_u32 s42, s42, 20000")
            a("L_probe:")
            i("s_memrealtime s[50:51]")
            i("s_waitcnt lgkmcnt(0)")
            i("s_sub_u32 s43, s50, s60")
            i("s_cmp_lt_u32 s43, s42")
            i("s_cbranch_scc1 L_probe")
    a("L_end:")
    i("s_endpgm")
    a(f""".section .rodata,"a"
.p2align 6
.amdhsa_kernel {KNAME}
  .amdhsa_next_free_vgpr {NV}
  .amdhsa_next_free_sgpr {96 if o.stamps else 64}
  .amdhsa_accum_offset {(NV + 3) // 4 * 4}
  .amdhsa_group_segment_fixed_size 0
  .amdhsa_kernarg_size 48
  .amdhsa_user_sgpr_count 2
  .amdhsa_user_sgpr_kernarg_segment_ptr 1
  .amdhsa_system_sgpr_workgroup_id_x 1
  .amdhsa_float_denorm_mode_32 3
.end_amdhsa_kernel""")
    return a.text()


def main():
    ap = argparse.ArgumentParser()
    ap.add_argument("-o", default="-")
    ap.add_argument("--xcdswz", type=int, default=2)
    ap.add_argument("--near", type=int, default=1)
    ap.add_argument("--pads", type=int, default=3)
    ap.add_argument("--split", type=int, default=1)
    ap.add_argument("--wgrp", type=int, default=1)
    ap.add_argument("--sbar", type=int, default=0)
    ap.add_argument("--ldflags", default="nt")
    ap.add_argument("--stflags", default="nt")
    ap.add_argument("--stflags2", default="nt+sc1")
    ap.add_argument("--nst2", type=int, default=16)
    ap.add_argument("--nst2e", type=int, default=0)
    ap.add_argument("--stamps", type=int, default=0)
    ap.add_argument("--probe", default="")
    ap.add_argument("--probewave", type=int, default=0)
    ap.add_argument("--x9", default="")
    o = ap.parse_args()
    t = gen(o)
    if o.o == "-":
        sys.stdout.write(t)
    else:
        open(o.o, "w").write(t)


if __name__ == "__main__":
    main()
```

```python
import argparse
import struct
import sys

XBYTES = 512 * 512 * 96 * 2
NWG = 256
KNAME = "standalone__se_block__vision_kernel"

HEADER = """; Kernarg layout for this problem (48 bytes, ptrs only, base s[0:1]):
;   offset   0: d_in[0] x  shape=(1, 512, 512, 96) dtype=bfloat16 strides=(50331648, 98304, 192, 2) contiguous=True
;   offset   8: d_in[1] w_down  shape=(96, 6) dtype=bfloat16 strides=(12, 2) contiguous=True
;   offset  16: d_in[2] w_up  shape=(6, 96) dtype=bfloat16 strides=(192, 2) contiguous=True
;
;  2. wave 0 adds the WG sums to one of 4 replicas in d_ws with returning float atomics on
;     16-byte granules {3 sums, count}; the WG that sees the final count publishes the granule
;  4. all waves scale their registers and store
; WG 0 zeroes the hand-off area first and raises a flag in d_debug.
"""


def f2u(x):
    return struct.unpack("<I", struct.pack("<f", x))[0]


class Asm:
    def __init__(self):
        self.l = []

    def __call__(self, s):
        for line in s.strip("\n").split("\n"):
            self.l.append(line)

    def i(self, s, c=None):
        self.l.append("    " + s + (f"    ; {c}" if c else ""))

    def c(self, s):
        self.l.append("    ; " + s)

    def text(self):
        return "\n".join(self.l) + "\n"


def gen(o):
    W, L, UNIT, R, LS = 8, 32, 768, 4, 256
    near = o.near
    a = Asm()
    i = a.i
    LDS_TR, LDS_SCALE, LDS_SLOT = 0, 512, 1024
    lds = LDS_SLOT + W * 512
    a(HEADER)
    a(f"; @launch grid=({NWG},1,1) block=({W*64},1,1) lds={lds}")
    a(f""".amdgcn_target "amdgcn-amd-amdhsa--gfx950"
.text
.globl {KNAME}
.p2align 12
.p2align 8
.type {KNAME},@function
{KNAME}:""")

    V_OFF, V_A, V_D, V_LANE, V_POLL, V_ATOM, V_FLAG, V_L4, V_SCA = 1, 2, 6, 10, 11, 12, 13, 14, 15
    V_WRA, V_RDA, V_TRA, V_PUB, V_T, V_ZA, V_WD, V_WU, V_SC, V_Q, V_DATA = 16, 17, 18, 19, 20, 30, 31, 40, 52, 60, 76
    NV = V_DATA + 4 * L
    dreg = lambda k: f"v[{V_DATA+4*k}:{V_DATA+4*k+3}]"
    T, P, Q = V_T, V_SC, V_Q

    nstamp = [0]

    def stamp(k):
        if o.stamps:
            nstamp[0] = max(nstamp[0], k + 1)
            i(f"s_memrealtime s[{60+2*k}:{61+2*k}]")

    def x9(tag):
        if o.x9 == tag:
            i("s_memrealtime s[78:79]")

    ldf = o.ldflags.replace("+", " ")
    stf = o.stflags.replace("+", " ")
    stf2 = o.stflags2.replace("+", " ")
    u_stride = NWG * W * UNIT

    def mem(op, k, reg, srd, flags):
        i(f"{op} {reg}, v{V_OFF}, {srd}, s40 offen {flags}".rstrip())
        if k != L - 1:
            i("s_add_u32 s40, s40, s55")

    def pad(name, target):
        if o.pads:
            a(f"{name}:")
            i(f"s_cbranch_execz {target}", "landing pad of the instruction-cache warm-up hops (EXEC = 0 only there)")

    stamp(0)
    if o.stamps:
        i("s_memtime s[88:89]")
    i("s_load_dwordx2 s[16:17], s[0:1], 0", "x")
    i("s_load_dwordx2 s[24:25], s[0:1], 40", "ws")
    i(f"v_lshrrev_b32 v{T}, 6, v0")
    i(f"v_and_b32 v{T+1}, 15, v0", "n = 16-byte chunk of the pixel (12 used)")
    i(f"v_readfirstlane_b32 s3, v{T}", "wave id")
    i(f"v_bfe_u32 v{T+2}, v0, 4, 2", "q = pixel of the 4")
    i(f"s_cmp_ge_u32 s2, {NWG}")
    i("s_cbranch_scc1 L_exit", "workgroups past the data exit")
    i(f"v_mul_u32_u24 v{V_OFF}, 192, v{T+2}")
    i(f"v_lshl_add_u32 v{V_OFF}, v{T+1}, 4, v{V_OFF}")
    if o.pads & 1:
        a.c("waves 6 and 7 touch the code further down while the kernarg loads are under way")
        i("s_cmp_lt_u32 s3, 6")
        i("s_cbranch_scc1 L_back1")
        i("s_mov_b64 exec, 0")
        i("s_cmp_eq_u32 s3, 6")
        i("s_cbranch_scc1 L_padA")
        i("s_branch L_padB")
        a("L_back1:")
    if o.xcdswz == 2:
        a.c("WGs with equal id mod 8 get neighbouring 6 KiB pieces (speed only)")
        i("s_and_b32 s42, s2, 7")
        i("s_bfe_u32 s43, s2, 0x10003")
        i("s_lshl1_add_u32 s42, s42, s43")
        i("s_andn2_b32 s43, s2, 15")
        i("s_or_b32 s42, s42, s43")
        i("s_lshl3_add_u32 s41, s42, s3")
    elif o.xcdswz > 2:
        g = o.xcdswz.bit_length() - 1
        i("s_and_b32 s42, s2, 7")
        i(f"s_bfe_u32 s43, s2, {3 | (g << 16):#x}")
        i(f"s_lshl_b32 s42, s42, {g}")
        i("s_or_b32 s42, s42, s43")
        i(f"s_andn2_b32 s43, s2, {(8 << g) - 1}")
        i("s_or_b32 s42, s42, s43")
        i("s_lshl3_add_u32 s41, s42, s3")
    else:
        i("s_lshl3_add_u32 s41, s2, s3")
    i(f"s_mulk_i32 s41, {UNIT}")
    i(f"s_mov_b32 s18, {XBYTES}")
    i("s_mov_b32 s19, 0x00020000")
    i(f"s_mov_b32 s55, {u_stride}")
    i("s_mov_b32 exec_lo, 0x0fff0fff")
    i("s_mov_b32 s40, s41")
    i("s_mov_b32 exec_hi, exec_lo")
    i("s_or_b32 s42, s2, s3")
    i("s_waitcnt lgkmcnt(0)")
    i("s_cbranch_scc0 L_zero")
    a("L_loads:")
    stamp(1)
    for k in range(L):
        mem("buffer_load_dwordx4", k, dreg(k), "s[16:19]", ldf)
        if o.x9 == f"f{k}":
            i(f"s_waitcnt vmcnt({k})")
            i("s_memrealtime s[78:79]")
    stamp(2)
    i("s_load_dwordx2 s[20:21], s[0:1], 24", "out")
    i("s_load_dwordx2 s[28:29], s[0:1], 32", "debug")
    i("s_mov_b32 s26, 0x10000000")
    i("s_mov_b32 s27, 0x00020000")
    i("s_movk_i32 s30, 256")
    i("s_mov_b32 s31, 0x00020000")
    i("s_mov_b64 s[44:45], exec")
    i("s_mov_b64 exec, -1")
    i("s_mov_b32 s22, s18")
    i("s_mov_b32 s23, 0x00020000")
    i(f"v_and_b32 v{V_LANE}, 63, v0")
    i(f"v_and_b32 v{T}, 15, v0", "A[i][k] = 1 where k%8 == i (i<8): sums the 4 pixels per channel")
    i(f"v_and_b32 v{T+1}, 1, v0")
    i(f"v_lshlrev_b32 v{T+1}, 4, v{T+1}")
    i(f"v_mov_b32 v{T+2}, 0x3f80")
    i(f"v_lshlrev_b32 v{T+1}, v{T+1}, v{T+2}")
    i(f"v_lshrrev_b32 v{T+2}, 1, v{T}")
    for r in range(4):
        i(f"v_cmp_eq_u32 vcc, {r}, v{T+2}")
        i(f"v_mov_b32 v{V_D+r}, 0")
        i("s_nop 0")
        i(f"v_cndmask_b32 v{V_A+r}, 0, v{T+1}, vcc")
    a.c("slot write address: wave*512 + (n/6)*256 + (n%6)*32 + (u&1)*16")
    i(f"v_bfe_u32 v{T+3}, v0, 4, 1")
    i(f"v_lshlrev_b32 v{T+3}, 4, v{T+3}")
    i("s_lshl_b32 s42, s3, 9")
    i(f"s_addk_i32 s42, {LDS_SLOT}")
    i(f"v_add_u32 v{T+3}, s42, v{T+3}")
    i(f"v_mul_u32_u24 v{T+5}, 43, v{T}")
    i(f"v_lshrrev_b32 v{T+5}, 8, v{T+5}")
    i(f"v_mul_u32_u24 v{T+6}, 6, v{T+5}")
    i(f"v_sub_u32 v{T+6}, v{T}, v{T+6}")
    i(f"v_lshl_add_u32 v{V_WRA}, v{T+5}, 8, v{T+3}")
    i(f"v_lshl_add_u32 v{V_WRA}, v{T+6}, 5, v{V_WRA}")
    i(f"v_lshlrev_b32 v{T+6}, 5, v{T}")
    i(f"v_add_u32 v{V_SCA}, {LDS_SCALE}, v{T+6}", "scale address: n*32")
    i(f"v_lshlrev_b32 v{V_L4}, 2, v{V_LANE}")
    i(f"v_lshlrev_b32 v{V_POLL}, 4, v{V_LANE}")
    i(f"v_lshrrev_b32 v{T+4}, 2, v{V_LANE}")
    i(f"v_and_b32 v{T+5}, 3, v{V_LANE}")
    i(f"v_mul_u32_u24 v{V_RDA}, 3, v{T+4}")
    i(f"v_add_lshl_u32 v{V_RDA}, v{V_RDA}, v{T+5}, 2", "slot read address: (3*(l>>2) + (l&3))*4")
    i(f"v_lshrrev_b32 v{T+6}, 4, v{V_LANE}", "line")
    i(f"v_lshlrev_b32 v{V_TRA}, 6, v{T+6}")
    i(f"v_lshl_add_u32 v{V_TRA}, v{T+5}, 4, v{V_TRA}", "transpose address: line*64 + granule*16")
    i(f"v_bfe_u32 v{T+7}, v{V_LANE}, 2, 1")
    i(f"v_lshl_add_u32 v{V_PUB}, v{T+7}, 11, v{V_TRA}")
    i(f"v_bfe_u32 v{T+7}, v{V_LANE}, 3, 1")
    i(f"v_lshl_add_u32 v{V_PUB}, v{T+7}, 13, v{V_PUB}", "publish address: + copy")
    i(f"v_lshlrev_b32 v{T+6}, 8, v{T+6}")
    i(f"v_lshl_add_u32 v{V_ATOM}, v{T}, 2, v{T+6}", "atomic address: line*256 + (l&15)*4")
    i("s_cmp_eq_u32 s3, 0")
    i("s_cbranch_scc1 L_ctl")
    if o.pads & 2:
        a.c("waves 1-3 touch the store code while their loads fly")
        i("s_cmp_gt_u32 s3, 3")
        i("s_cbranch_scc1 L_now")
        i("s_mov_b64 exec, 0")
        i("s_cmp_eq_u32 s3, 2")
        i("s_cbranch_scc1 L_padD")
        i("s_cmp_eq_u32 s3, 3")
        i("s_cbranch_scc1 L_padE")
        i("s_branch L_padC")
        a("L_back2:")
        i("s_mov_b64 exec, -1")
    i("s_branch L_now")
    a("L_exit:")
    i("s_endpgm")
    a("L_ctl:")
    a.c("wave 0: weights, flag and hand-off addresses (the extra loads only make its counted waits stricter)")
    i("s_load_dwordx4 s[4:7], s[0:1], 8", "w_down, w_up")
    i("s_movk_i32 s34, 1152")
    i("s_mov_b32 s35, 0x00020000")
    i("s_movk_i32 s38, 1152")
    i("s_mov_b32 s39, 0x00020000")
    for r in range(21):
        i(f"v_mov_b32 v{V_WD+r}, 0")
    i(f"v_and_b32 v{T+1}, 31, v0")
    i(f"v_lshrrev_b32 v{T+4}, 5, v0")
    i(f"v_mul_u32_u24 v{T+2}, 36, v{T+1}")
    i(f"v_mad_u32_u24 v{T+2}, v{T+4}, 6, v{T+2}")
    i(f"v_lshlrev_b32 v{T+3}, 1, v0")
    i("s_waitcnt lgkmcnt(0)")
    i("s_mov_b64 s[32:33], s[4:5]")
    i("s_mov_b64 s[36:37], s[6:7]")
    pad("L_padA", "L_back1") if o.pads & 1 else None
    for ii in range(3):
        for jj in range(3):
            i(f"buffer_load_short_d16_hi v{V_WD+3*ii+jj}, v{T+2}, s[32:35], 0 offen offset:{12*ii+2*jj}")
    for j in range(6):
        for h in range(2):
            i(f"buffer_load_short_d16_hi v{V_WU+2*j+h}, v{T+3}, s[36:39], 0 offen offset:{192*j+128*h}")
    i("s_mov_b64 exec, 1")
    i(f"buffer_load_dword v{V_FLAG}, off, s[28:31], 0 sc1", "zeroing-done flag")
    i("s_mov_b64 exec, -1")
    i("s_mov_b32 s46, 0x88888888")
    i("s_mov_b32 s47, s46")
    i(f"s_mov_b32 s51, {f2u(float(NWG // R)):#x}", "WGs per replica, as float")
    i("s_mov_b32 s50, 0x200000", "spin budget")
    a("L_now:")
    if o.otouch:
        a.c("wave 3 touches the pages of out this WG will write (address translation warm-up; the value is unused)")
        i(f"s_cmp_lg_u32 s3, {o.otouch}")
        i("s_cbranch_scc1 L_now2")
        i(f"v_mul_lo_u32 v{T}, v{V_LANE}, s55")
        i("s_waitcnt lgkmcnt(0)")
        i("s_mov_b32 exec_hi, 0")
        i(f"buffer_load_dword v{T+1}, v{T}, s[20:23], s41 offen nt")
        i("s_mov_b32 exec_hi, -1")
        a("L_now2:")
    for k in range(L):
        if k % o.wgrp == 0:
            i(f"s_waitcnt vmcnt({L - k - o.wgrp})")
        i(f"v_mfma_f32_16x16x32_bf16 v[{V_D}:{V_D+3}], v[{V_A}:{V_A+3}], {dreg(k)}, v[{V_D}:{V_D+3}]")
    stamp(3)
    if o.stamps:
        i("s_mov_b32 s68, 0")
        if o.x9 == "atom":
            i("s_mov_b32 s78, 0")
    i("s_mov_b32 exec_lo, 0x0fff0fff")
    i("s_mov_b32 exec_hi, 0")
    i("s_cmp_lg_u32 s3, 0")
    i("s_nop 4")
    i(f"ds_write_b128 v{V_WRA}, v[{V_D}:{V_D+3}]")
    i("s_mov_b64 exec, -1")
    i("s_cbranch_scc0 L_ctl2")
    i("s_waitcnt lgkmcnt(0)")
    i("s_barrier")
    i("s_branch L_wait2")
    a("L_flagspin:")
    a.c("the zeroing-done flag was not up yet when this wave read it")
    i(f"buffer_load_dword v{V_FLAG}, off, s[28:31], 0 sc1")
    i("s_sub_u32 s50, s50, 1")
    i("s_cbranch_scc1 L_flagok")
    i("s_waitcnt vmcnt(0)")
    a("L_ctl2:")
    i(f"v_readfirstlane_b32 s43, v{V_FLAG}")
    i("s_cmp_eq_u32 s43, 0")
    i("s_cbranch_scc1 L_flagspin")
    a("L_flagok:")
    pad("L_padB", "L_back1") if o.pads & 1 else None
    a.c("replica = 2*q + bit 3 of the id; q depends on the id and the flag word only, so it holds 64 WGs")
    if near:
        i("s_getreg_b32 s54, hwreg(HW_REG_XCC_ID, 0, 3)")
        i("s_lshr_b32 s42, s43, 1", "XCC of WG 0")
        i("s_add_u32 s42, s42, s2")
        i("s_lshr_b32 s43, s43, 2")
        i("s_xor_b32 s42, s42, s43", "bit 2: side the id is expected on ^ side of region 0")
        i("s_xor_b32 s52, s54, s43")
        i("s_bfe_u32 s42, s42, 0x10002")
        i("s_bfe_u32 s52, s52, 0x10002")
        i("s_and_b32 s53, s54, 1")
    else:
        i("s_bfe_u32 s42, s2, 0x10002")
        i("s_bfe_u32 s52, s2, 0x10001")
        i("s_and_b32 s53, s2, 1")
    i("s_bfe_u32 s43, s2, 0x10003")
    i("s_lshl2_add_u32 s48, s42, s43")
    i("s_lshl_b32 s48, s48, 11", "accumulators: q*8192 + sub*2048")
    i(f"s_add_u32 s49, s48, {4*LS}")
    i("s_lshl1_add_u32 s56, s42, s43")
    i("s_lshl_b32 s56, s56, 9")
    i("s_addk_i32 s56, 4096", "published line: 4096 + replica*512 (+ copy)")
    i("s_add_u32 s57, s56, 256")
    i("s_lshl2_add_u32 s52, s52, s53")
    i("s_lshl_b32 s52, s52, 11")
    i("s_addk_i32 s52, 4096", "polled copy: q*8192 + 4096 + sub*2048")
    i("s_add_u32 s53, s52, 1024")
    i("s_mov_b32 s43, 0x36800000", "2^-18 (1/pixels) folded into w_down")
    for r in range(9):
        i(f"v_mul_f32 v{V_WD+r}, s43, v{V_WD+r}")
    i("s_mov_b32 s42, 0xbfb8aa3b", "-log2(e)")
    i("s_waitcnt lgkmcnt(0)")
    i("s_barrier")
    for k in range(W):
        i(f"ds_read2st64_b32 v[{Q+2*k}:{Q+2*k+1}], v{V_RDA} offset0:{LDS_SLOT//256+2*k} offset1:{LDS_SLOT//256+2*k+1}")
    S0, S1 = T, T + 1
    step = 1
    while step < W:
        for k in range(0, W, 2 * step):
            if step == 1:
                i(f"s_waitcnt lgkmcnt({W-2-k})")
            dst = T + 2 if step * 2 >= W else Q + 2 * k
            i(f"v_pk_add_f32 v[{dst}:{dst+1}], v[{Q+2*k}:{Q+2*k+1}], v[{Q+2*(k+step)}:{Q+2*(k+step)+1}]")
        step *= 2
    i(f"v_cndmask_b32 v{S0}, v{T+2}, 1.0, s[46:47]")
    i(f"v_cndmask_b32 v{S1}, v{T+3}, 1.0, s[46:47]")
    i(f"buffer_atomic_add_f32 v{S0}, v{V_ATOM}, s[24:27], s48 offen sc0")
    i(f"buffer_atomic_add_f32 v{S1}, v{V_ATOM}, s[24:27], s49 offen sc0")
    stamp(4)
    i(f"v_cndmask_b32 v{T+2}, v{T+2}, 1.0, s[46:47]")
    i(f"v_cndmask_b32 v{T+3}, v{T+3}, 1.0, s[46:47]")
    i("s_waitcnt vmcnt(1)")
    i(f"v_add_f32 v{T+2}, v{T+2}, v{S0}")
    i("s_waitcnt vmcnt(0)")
    i(f"v_add_f32 v{T+3}, v{T+3}, v{S1}")
    x9("atom")
    a.c("transpose through LDS: lane (line, copy, granule) gets one whole 16-byte granule")
    i(f"ds_write2st64_b32 v{V_L4}, v{T+2}, v{T+3} offset0:0 offset1:1")
    i(f"ds_read_b128 v[{P}:{P+3}], v{V_TRA}")
    i(f"ds_read_b128 v[{P+4}:{P+7}], v{V_TRA} offset:256")
    i("s_waitcnt lgkmcnt(1)" if not o.stamps else "s_waitcnt lgkmcnt(0)")
    i(f"v_cmp_eq_f32 vcc, s51, v{P+3}")
    i("s_and_b64 exec, vcc, vcc")
    i("s_cbranch_scc0 L_nopubA")
    i(f"buffer_store_dwordx4 v[{P}:{P+3}], v{V_PUB}, s[24:27], s56 offen sc1")
    a("L_nopubA:")
    i("s_mov_b64 exec, -1")
    i("s_waitcnt lgkmcnt(0)")
    i(f"v_cmp_eq_f32 vcc, s51, v{P+7}")
    i("s_and_b64 exec, vcc, vcc")
    i("s_cbranch_scc0 L_nopubB")
    i(f"buffer_store_dwordx4 v[{P+4}:{P+7}], v{V_PUB}, s[24:27], s57 offen sc1")
    a("L_nopubB:")
    i("s_mov_b64 exec, -1")
    a.c("poll the published replica sums")
    a("L_poll:")
    i(f"buffer_load_dwordx4 v[{Q}:{Q+3}], v{V_POLL}, s[24:27], s52 offen sc1")
    i(f"buffer_load_dwordx4 v[{Q+4}:{Q+7}], v{V_POLL}, s[24:27], s53 offen sc1")
    i("s_sub_u32 s50, s50, 1")
    i("s_cbranch_scc1 L_done")
    i("s_waitcnt vmcnt(1)")
    i(f"v_cmp_eq_f32 vcc, s51, v{Q+3}")
    i("s_waitcnt vmcnt(0)")
    i(f"v_cmp_eq_f32 s[4:5], s51, v{Q+7}")
    i("s_and_b64 vcc, vcc, s[4:5]")
    i("s_cmp_eq_u64 vcc, -1")
    i("s_cbranch_scc0 L_poll")
    a("L_done:")
    stamp(5)
    i(f"v_pk_add_f32 v[{P}:{P+1}], v[{Q}:{Q+1}], v[{Q+4}:{Q+5}]")
    i(f"v_pk_add_f32 v[{P+4}:{P+5}], v[{Q}:{Q+1}], v[{Q+4}:{Q+5}]")
    i(f"v_add_f32 v{P+2}, v{Q+2}, v{Q+6}")
    i(f"v_add_f32 v{P+6}, v{Q+2}, v{Q+6}")
    i(f"v_permlane32_swap_b32 v{P+4}, v{P}")
    i(f"v_permlane32_swap_b32 v{P+5}, v{P+1}")
    i(f"v_permlane32_swap_b32 v{P+6}, v{P+2}")
    i(f"v_pk_add_f32 v[{P}:{P+1}], v[{P}:{P+1}], v[{P+4}:{P+5}]")
    i(f"v_add_f32 v{P+2}, v{P+2}, v{P+6}")
    for r in range(3):
        i(f"v_cvt_pk_bf16_f32 v{P+r}, 0, v{P+r}", "sum rounded to bf16, left in the high half" if r == 0 else None)
    H = P + 4
    for jj in range(3):
        i(f"v_mul_f32 v{H+jj}, v{P}, v{V_WD+jj}")
    for ii in (1, 2):
        for jj in range(3):
            i(f"v_fmac_f32 v{H+jj}, v{P+ii}, v{V_WD+3*ii+jj}")
    for dpp in ("quad_perm:[1,0,3,2]", "quad_perm:[2,3,0,1]", "row_half_mirror", "row_mirror"):
        for jj in range(3):
            i(f"v_add_f32_dpp v{H+jj}, v{H+jj}, v{H+jj} {dpp} row_mask:0xf bank_mask:0xf")
    for jj in range(3):
        i(f"v_add_f32_dpp v{P}, v{H+jj}, v{H+jj} row_bcast:15 row_mask:0xa bank_mask:{1 << jj:#x}",
          "h[j] -> lane 16 + 4*(j%3) + 32*(j/3)" if jj == 0 else None)
    i(f"v_cvt_pk_bf16_f32 v{H}, 0, v{P}", "h (bf16)")
    i(f"v_mul_f32 v{P}, s42, v{H}")
    i(f"v_exp_f32 v{P}, v{P}")
    i("s_nop 0")
    i(f"v_add_f32 v{P}, 1.0, v{P}")
    i(f"v_rcp_f32 v{P}, v{P}")
    i("s_nop 0")
    i(f"v_mul_f32 v{H}, v{H}, v{P}")
    i(f"v_cvt_pk_bf16_f32 v{H}, 0, v{H}", "silu(h) (bf16)")
    i("s_nop 0")
    for j in range(6):
        i(f"v_readlane_b32 s{8+j}, v{H}, {16 + 4*(j % 3) + 32*(j//3)}")
    Z = P
    sel = lambda j: "op_sel:[0,1,0] op_sel_hi:[1,1,1]" if j & 1 else "op_sel:[0,0,0] op_sel_hi:[1,0,1]"
    i(f"v_pk_mul_f32 v[{Z}:{Z+1}], v[{V_WU}:{V_WU+1}], s[8:9] op_sel:[0,0] op_sel_hi:[1,0]")
    for j in range(1, 6):
        sp = 8 + (j & ~1)
        i(f"v_pk_fma_f32 v[{Z}:{Z+1}], v[{V_WU+2*j}:{V_WU+2*j+1}], s[{sp}:{sp+1}], v[{Z}:{Z+1}] {sel(j)}")
    i(f"v_cvt_pk_bf16_f32 v{Z}, 0, v{Z}", "z (bf16)")
    i(f"v_cvt_pk_bf16_f32 v{Z+1}, 0, v{Z+1}")
    i(f"v_pk_mul_f32 v[{Z}:{Z+1}], v[{Z}:{Z+1}], s[42:43] op_sel:[0,0] op_sel_hi:[1,0]")
    i(f"v_exp_f32 v{Z}, v{Z}")
    i(f"v_exp_f32 v{Z+1}, v{Z+1}")
    i("s_nop 0")
    i(f"v_pk_add_f32 v[{Z}:{Z+1}], v[{Z}:{Z+1}], 1.0 op_sel_hi:[1,0]")
    i(f"v_rcp_f32 v{Z}, v{Z}")
    i(f"v_rcp_f32 v{Z+1}, v{Z+1}")
    i(f"v_cvt_pk_bf16_f32 v{Z}, 0, v{Z}", "sigmoid (bf16)")
    i(f"v_cvt_pk_bf16_f32 v{Z+1}, 0, v{Z+1}")
    i(f"ds_write2st64_b32 v{V_L4}, v{Z}, v{Z+1} offset0:{LDS_SCALE//256} offset1:{LDS_SCALE//256+1}")
    i("s_waitcnt lgkmcnt(0)")
    i("s_barrier")
    i("s_branch L_go")
    a("L_zero:")
    a.c("WG 0, wave 0: zero the 16 KiB hand-off area, then raise the flag")
    i("s_load_dwordx2 s[28:29], s[0:1], 32", "debug")
    if near:
        i("s_load_dword s6, s[24:25], 16384 glc", "first touch of the two lines timed below")
        i("s_load_dword s7, s[24:25], 24576 glc")
    i("s_mov_b32 s26, 0x10000000")
    i("s_mov_b32 s27, 0x00020000")
    i("s_movk_i32 s30, 256")
    i("s_mov_b32 s31, 0x00020000")
    i("s_mov_b64 s[44:45], exec")
    i("s_mov_b64 exec, -1")
    i(f"v_lshlrev_b32 v{V_POLL}, 4, v0")
    for r in range(4):
        i(f"v_mov_b32 v{P+r}, 0")
    i("s_mov_b32 s42, 0")
    a("L_zloop:")
    for j in range(4):
        off = f" offset:{1024*j}" if j else ""
        i(f"buffer_store_dwordx4 v[{P}:{P+3}], v{V_POLL}, s[24:27], s42 offen{off} sc1")
    i("s_addk_i32 s42, 4096")
    i("s_cmpk_lt_u32 s42, 16384")
    i("s_cbranch_scc1 L_zloop")
    i("s_waitcnt lgkmcnt(0)")
    if near:
        a.c("which of the two 8 KiB regions is closer to this die (speed only): timed uncached scalar reads")
        for h in range(2):
            i("s_memtime s[8:9]")
            i("s_waitcnt lgkmcnt(0)")
            i(f"s_load_dword s6, s[24:25], {16384 + 8192*h} glc")
            i("s_waitcnt lgkmcnt(0)")
            i("s_memtime s[10:11]")
            i("s_waitcnt lgkmcnt(0)")
            i(f"s_sub_u32 s{4+h}, s10, s8")
        if o.stamps:
            i("s_lshl_b32 s92, s5, 16")
            i("s_or_b32 s92, s92, s4")
        i("s_getreg_b32 s6, hwreg(HW_REG_XCC_ID, 0, 3)")
        i("s_cmp_lt_u32 s4, s5")
        i("s_cselect_b32 s4, 0, 4")
        i("s_xor_b32 s4, s4, s6")
        i("s_and_b32 s4, s4, 4", "bit 2: side of region 0")
        i("s_lshl1_add_u32 s4, s4, s6")
        i("s_lshl1_add_u32 s4, s4, 1", "flag = 1 | XCC << 1 | side << 4")
        i(f"v_mov_b32 v{T+4}, s4")
    else:
        i(f"v_mov_b32 v{T+4}, 1")
    i("s_mov_b64 exec, 1")
    i("s_waitcnt vmcnt(0)")
    i(f"buffer_store_dword v{T+4}, off, s[28:31], 0 sc1")
    if o.stamps:
        i("s_memrealtime s[94:95]")
    i("s_mov_b64 exec, s[44:45]")
    i("s_branch L_loads")
    if o.split:
        a(".p2align 12")
    a("L_wait2:")
    pad("L_padC", "L_padF") if o.pads & 2 else None
    i("s_barrier")
    a("L_go:")
    i(f"ds_read_b128 v[{V_SC}:{V_SC+3}], v{V_SCA}")
    i(f"ds_read_b128 v[{V_SC+4}:{V_SC+7}], v{V_SCA} offset:16")
    i("s_mov_b64 exec, s[44:45]")
    i("s_mov_b32 s40, s41")
    stamp(6)
    i("s_mov_b32 s43, 0xffff0000")
    for k in range(L):
        d = V_DATA + 4 * k
        for r in range(4):
            i(f"v_lshlrev_b32 v{T+2*r}, 16, v{d+r}")
            i(f"v_and_b32 v{T+2*r+1}, s43, v{d+r}")
        if k == 0:
            i("s_waitcnt lgkmcnt(0)")
        for r in range(4):
            i(f"v_pk_mul_f32 v[{T+2*r}:{T+2*r+1}], v[{T+2*r}:{T+2*r+1}], v[{V_SC+2*r}:{V_SC+2*r+1}]")
        for r in range(4):
            i(f"v_cvt_pk_bf16_f32 v{d+r}, v{T+2*r}, v{T+2*r+1}")
        mem("buffer_store_dwordx4", k, f"v[{d}:{d+3}]", "s[20:23]", stf2 if k < o.nst2 or k >= L - o.nst2e else stf)
        if o.x9 == f"st{k}":
            i("s_waitcnt vmcnt(0)")
            i("s_memrealtime s[78:79]")
        if o.pads & 2 and k in (8, 17, 26):
            pad({8: "L_padD", 17: "L_padE", 26: "L_padF"}[k], "L_back2")
        if o.sbar and k % o.sbar == o.sbar - 1 and k != L - 1:
            i("s_barrier")
    if o.stamps:
        stamp(7)
        i("s_waitcnt vmcnt(0)")
        stamp(8)
        i("s_memtime s[90:91]")
        i("s_mov_b64 exec, -1")
        i("s_getreg_b32 s42, hwreg(HW_REG_HW_ID)")
        i("s_getreg_b32 s43, hwreg(HW_REG_XCC_ID)")
        i("s_waitcnt lgkmcnt(0)")
        i(f"v_mov_b32 v{V_ZA}, 0")
        for k in range(nstamp[0]):
            i(f"v_writelane_b32 v{V_ZA}, s{60+2*k}, {k}")
        i(f"v_writelane_b32 v{V_ZA}, s78, 9")
        i(f"v_writelane_b32 v{V_ZA}, s92, 10")
        i(f"v_writelane_b32 v{V_ZA}, s94, 13")
        i("s_sub_u32 s90, s90, s88")
        i(f"v_writelane_b32 v{V_ZA}, s90, 11")
        i("s_sub_u32 s50, 0x200000, s50")
        i(f"v_writelane_b32 v{V_ZA}, s50, 12")
        i(f"v_writelane_b32 v{V_ZA}, s42, 14")
        i(f"v_writelane_b32 v{V_ZA}, s43, 15")
        i("s_lshl_b32 s42, s2, 4")
        i("s_add_u32 s42, s42, s3")
        i("s_lshl_b32 s42, s42, 6")
        i("s_add_u32 s42, s42, 0x4000000")
        i("s_mov_b64 exec, 0xffff")
        i(f"buffer_store_dword v{V_ZA}, v{V_L4}, s[24:27], s42 offen")
        if o.probe:
            pa, pb, pk, pw = [int(x) for x in o.probe.split(",")]
            i(f"s_cmp_lg_u32 s3, {o.probewave}")
            i("s_cbranch_scc1 L_end")
            i(f"s_cmp_lg_u32 s2, {pw}")
            i("s_cbranch_scc1 L_end")
            i(f"s_sub_u32 s42, s{60+2*pb}, s{60+2*pa}")
            i(f"s_mul_i32 s42, s42, {pk}")
            i("s_add_u32 s42, s42, 4000")
            i("s_min_u32 s42, s42, 20000")
            a("L_probe:")
            i("s_memrealtime s[50:51]")
            i("s_waitcnt lgkmcnt(0)")
            i("s_sub_u32 s43, s50, s60")
            i("s_cmp_lt_u32 s43, s42")
            i("s_cbranch_scc1 L_probe")
    a("L_end:")
    i("s_endpgm")
    a(f""".section .rodata,"a"
.p2align 6
.amdhsa_kernel {KNAME}
  .amdhsa_next_free_vgpr {NV}
  .amdhsa_next_free_sgpr {96 if o.stamps else 64}
  .amdhsa_accum_offset {(NV + 3) // 4 * 4}
  .amdhsa_group_segment_fixed_size 0
  .amdhsa_kernarg_size 48
  .amdhsa_user_sgpr_count 2
  .amdhsa_user_sgpr_kernarg_segment_ptr 1
  .amdhsa_system_sgpr_workgroup_id_x 1
  .amdhsa_float_denorm_mode_32 3
.end_amdhsa_kernel""")
    return a.text()


def main():
    ap = argparse.ArgumentParser()
    ap.add_argument("-o", default="-")
    ap.add_argument("--xcdswz", type=int, default=2)
    ap.add_argument("--otouch", type=int, default=0)
    ap.add_argument("--near", type=int, default=1)
    ap.add_argument("--pads", type=int, default=3)
    ap.add_argument("--split", type=int, default=1)
    ap.add_argument("--wgrp", type=int, default=1)
    ap.add_argument("--sbar", type=int, default=0)
    ap.add_argument("--ldflags", default="nt")
    ap.add_argument("--stflags", default="nt")
    ap.add_argument("--stflags2", default="nt+sc1")
    ap.add_argument("--nst2", type=int, default=16)
    ap.add_argument("--nst2e", type=int, default=0)
    ap.add_argument("--stamps", type=int, default=0)
    ap.add_argument("--probe", default="")
    ap.add_argument("--probewave", type=int, default=0)
    ap.add_argument("--x9", default="")
    o = ap.parse_args()
    t = gen(o)
    if o.o == "-":
        sys.stdout.write(t)
    else:
        open(o.o, "w").write(t)


if __name__ == "__main__":
    main()
```

```python
import argparse
import struct
import sys

XBYTES = 512 * 512 * 96 * 2
NWG = 256
KNAME = "standalone__se_block__vision_kernel"

HEADER = """; Kernarg layout for this problem (48 bytes, ptrs only, base s[0:1]):
;   offset   0: d_in[0] x  shape=(1, 512, 512, 96) dtype=bfloat16 strides=(50331648, 98304, 192, 2) contiguous=True
;   offset   8: d_in[1] w_down  shape=(96, 6) dtype=bfloat16 strides=(12, 2) contiguous=True
;   offset  16: d_in[2] w_up  shape=(6, 96) dtype=bfloat16 strides=(192, 2) contiguous=True
;
;  2. wave 0 adds the WG sums to one of 4 replicas in d_ws with returning float atomics on
;     16-byte granules {3 sums, count}; the WG that sees the final count publishes the granule
;  4. all waves scale their registers and store
; WG 0 zeroes the hand-off area first and raises a flag in d_debug.
"""


def f2u(x):
    return struct.unpack("<I", struct.pack("<f", x))[0]


class Asm:
    def __init__(self):
        self.l = []

    def __call__(self, s):
        for line in s.strip("\n").split("\n"):
            self.l.append(line)

    def i(self, s, c=None):
        self.l.append("    " + s + (f"    ; {c}" if c else ""))

    def c(self, s):
        self.l.append("    ; " + s)

    def text(self):
        return "\n".join(self.l) + "\n"


def gen(o):
    W, L, UNIT, R, LS = 8, 32, 768, 4, 256
    near = o.near
    a = Asm()
    i = a.i
    LDS_TR, LDS_SCALE, LDS_SLOT = 0, 512, 1024
    lds = LDS_SLOT + W * 512
    a(HEADER)
    a(f"; @launch grid=({NWG},1,1) block=({W*64},1,1) lds={lds}")
    a(f""".amdgcn_target "amdgcn-amd-amdhsa--gfx950"
.text
.globl {KNAME}
.p2align 12
.p2align 8
.type {KNAME},@function
{KNAME}:""")

    V_OFF, V_A, V_D, V_LANE, V_POLL, V_ATOM, V_FLAG, V_L4, V_SCA = 1, 2, 6, 10, 11, 12, 13, 14, 15
    V_WRA, V_RDA, V_TRA, V_PUB, V_T, V_ZA, V_WD, V_WU, V_SC, V_Q, V_DATA = 16, 17, 18, 19, 20, 30, 31, 40, 52, 60, 76
    NV = V_DATA + 4 * L
    dreg = lambda k: f"v[{V_DATA+4*k}:{V_DATA+4*k+3}]"
    T, P, Q = V_T, V_SC, V_Q

    nstamp = [0]

    def stamp(k):
        if o.stamps:
            nstamp[0] = max(nstamp[0], k + 1)
            i(f"s_memrealtime s[{60+2*k}:{61+2*k}]")

    def x9(tag):
        if o.x9 == tag:
            i("s_memrealtime s[78:79]")

    ldf = o.ldflags.replace("+", " ")
    stf = o.stflags.replace("+", " ")
    stf2 = o.stflags2.replace("+", " ")
    u_stride = NWG * W * UNIT

    run = o.run
    u_stride *= run

    def mem(op, k, reg, srd, flags):
        j = k % run
        off = f" offset:{j * (UNIT if o.runw else 0)}" if j and o.runw else ""
        i(f"{op} {reg}, v{V_OFF}, {srd}, s40 offen{off} {flags}".rstrip())
        if k != L - 1:
            if run > 1 and not o.runw:
                st = W * UNIT // (2 if o.half else 1)
                i(f"s_add_u32 s40, s40, {st if j != run - 1 else u_stride - (run - 1) * st}")
            elif j == run - 1:
                i("s_add_u32 s40, s40, s55")
            if o.rot:
                i("s_cmp_ge_u32 s40, s18")
                i("s_cselect_b32 s58, s18, 0")
                i("s_sub_u32 s40, s40, s58")

    def pad(name, target):
        if o.pads:
            a(f"{name}:")
            i(f"s_cbranch_execz {target}", "landing pad of the instruction-cache warm-up hops (EXEC = 0 only there)")

    stamp(0)
    if o.stamps:
        i("s_memtime s[88:89]")
    i("s_load_dwordx2 s[16:17], s[0:1], 0", "x")
    i("s_load_dwordx2 s[24:25], s[0:1], 40", "ws")
    i(f"v_lshrrev_b32 v{T}, 6, v0")
    i(f"v_and_b32 v{T+1}, 15, v0", "n = 16-byte chunk of the pixel (12 used)")
    i(f"v_readfirstlane_b32 s3, v{T}", "wave id")
    i(f"v_bfe_u32 v{T+2}, v0, 4, 2", "q = pixel of the 4")
    i(f"s_cmp_ge_u32 s2, {NWG}")
    i("s_cbranch_scc1 L_exit", "workgroups past the data exit")
    i(f"v_mul_u32_u24 v{V_OFF}, 192, v{T+2}")
    i(f"v_lshl_add_u32 v{V_OFF}, v{T+1}, 4, v{V_OFF}")
    if o.pads & 1:
        a.c("waves 6 and 7 touch the code further down while the kernarg loads are under way")
        i("s_cmp_lt_u32 s3, 6")
        i("s_cbranch_scc1 L_back1")
        i("s_mov_b64 exec, 0")
        i("s_cmp_eq_u32 s3, 6")
        i("s_cbranch_scc1 L_padA")
        i("s_branch L_padB")
        a("L_back1:")
    if o.xcdswz == 2:
        a.c("WGs with equal id mod 8 get neighbouring 6 KiB pieces (speed only)")
        i("s_and_b32 s42, s2, 7")
        i("s_bfe_u32 s43, s2, 0x10003")
        i("s_lshl1_add_u32 s42, s42, s43")
        i("s_andn2_b32 s43, s2, 15")
        i("s_or_b32 s42, s42, s43")
        i("s_lshl3_add_u32 s41, s42, s3")
    elif o.xcdswz > 2:
        g = o.xcdswz.bit_length() - 1
        i("s_and_b32 s42, s2, 7")
        i(f"s_bfe_u32 s43, s2, {3 | (g << 16):#x}")
        i(f"s_lshl_b32 s42, s42, {g}")
        i("s_or_b32 s42, s42, s43")
        i(f"s_andn2_b32 s43, s2, {(8 << g) - 1}")
        i("s_or_b32 s42, s42, s43")
        i("s_lshl3_add_u32 s41, s42, s3")
    else:
        i("s_lshl3_add_u32 s41, s2, s3")
    if run > 1 and not o.runw:
        i("s_sub_u32 s41, s41, s3")
        i(f"s_mul_i32 s41, s41, {run}")
        i("s_add_u32 s41, s41, s3")
        if o.half:
            i("s_lshr_b32 s42, s3, 2")
            i(f"s_mul_i32 s42, s42, {4 * run - 4}")
            i("s_add_u32 s41, s41, s42")
    i(f"s_mulk_i32 s41, {UNIT * (run if o.runw else 1)}")
    if o.rot:
        i(f"s_bfe_u32 s42, s2, {o.rot}")
        i(f"s_mul_i32 s42, s42, {XBYTES >> (o.rot >> 16)}")
        i("s_add_u32 s41, s41, s42")
    i(f"s_mov_b32 s18, {XBYTES}")
    i("s_mov_b32 s19, 0x00020000")
    i(f"s_mov_b32 s55, {u_stride}")
    i("s_mov_b32 exec_lo, 0x0fff0fff")
    i("s_mov_b32 s40, s41")
    i("s_mov_b32 exec_hi, exec_lo")
    i("s_or_b32 s42, s2, s3")
    i("s_waitcnt lgkmcnt(0)")
    i("s_cbranch_scc0 L_zero")
    a("L_loads:")
    stamp(1)
    for k in range(L):
        if o.ldepth and k >= o.ldepth:
            i(f"s_waitcnt vmcnt({o.ldepth - 1})")
        lf = ldf
        if o.lpat:
            lf = {"s": "sc1", "n": "nt", "p": "", "w": "nt sc1", "0": "nt sc0"}[o.lpat[k % len(o.lpat)]]
        mem("buffer_load_dwordx4", k, dreg(k), "s[16:19]", lf)
        if o.x9 == f"f{k}":
            i(f"s_waitcnt vmcnt({k})")
            i("s_memrealtime s[78:79]")
    stamp(2)
    i("s_load_dwordx2 s[20:21], s[0:1], 24", "out")
    i("s_load_dwordx2 s[28:29], s[0:1], 32", "debug")
    i("s_mov_b32 s26, 0x10000000")
    i("s_mov_b32 s27, 0x00020000")
    i("s_movk_i32 s30, 256")
    i("s_mov_b32 s31, 0x00020000")
    i("s_mov_b64 s[44:45], exec")
    i("s_mov_b64 exec, -1")
    i("s_mov_b32 s22, s18")
    i("s_mov_b32 s23, 0x00020000")
    i(f"v_and_b32 v{V_LANE}, 63, v0")
    i(f"v_and_b32 v{T}, 15, v0", "A[i][k] = 1 where k%8 == i (i<8): sums the 4 pixels per channel")
    i(f"v_and_b32 v{T+1}, 1, v0")
    i(f"v_lshlrev_b32 v{T+1}, 4, v{T+1}")
    i(f"v_mov_b32 v{T+2}, 0x3f80")
    i(f"v_lshlrev_b32 v{T+1}, v{T+1}, v{T+2}")
    i(f"v_lshrrev_b32 v{T+2}, 1, v{T}")
    for r in range(4):
        i(f"v_cmp_eq_u32 vcc, {r}, v{T+2}")
        i(f"v_mov_b32 v{V_D+r}, 0")
        i("s_nop 0")
        i(f"v_cndmask_b32 v{V_A+r}, 0, v{T+1}, vcc")
    a.c("slot write address: wave*512 + (n/6)*256 + (n%6)*32 + (u&1)*16")
    i(f"v_bfe_u32 v{T+3}, v0, 4, 1")
    i(f"v_lshlrev_b32 v{T+3}, 4, v{T+3}")
    i("s_lshl_b32 s42, s3, 9")
    i(f"s_addk_i32 s42, {LDS_SLOT}")
    i(f"v_add_u32 v{T+3}, s42, v{T+3}")
    i(f"v_mul_u32_u24 v{T+5}, 43, v{T}")
    i(f"v_lshrrev_b32 v{T+5}, 8, v{T+5}")
    i(f"v_mul_u32_u24 v{T+6}, 6, v{T+5}")
    i(f"v_sub_u32 v{T+6}, v{T}, v{T+6}")
    i(f"v_lshl_add_u32 v{V_WRA}, v{T+5}, 8, v{T+3}")
    i(f"v_lshl_add_u32 v{V_WRA}, v{T+6}, 5, v{V_WRA}")
    i(f"v_lshlrev_b32 v{T+6}, 5, v{T}")
    i(f"v_add_u32 v{V_SCA}, {LDS_SCALE}, v{T+6}", "scale address: n*32")
    i(f"v_lshlrev_b32 v{V_L4}, 2, v{V_LANE}")
    i(f"v_lshlrev_b32 v{V_POLL}, 4, v{V_LANE}")
    i(f"v_lshrrev_b32 v{T+4}, 2, v{V_LANE}")
    i(f"v_and_b32 v{T+5}, 3, v{V_LANE}")
    i(f"v_mul_u32_u24 v{V_RDA}, 3, v{T+4}")
    i(f"v_add_lshl_u32 v{V_RDA}, v{V_RDA}, v{T+5}, 2", "slot read address: (3*(l>>2) + (l&3))*4")
    i(f"v_lshrrev_b32 v{T+6}, 4, v{V_LANE}", "line")
    i(f"v_lshlrev_b32 v{V_TRA}, 6, v{T+6}")
    i(f"v_lshl_add_u32 v{V_TRA}, v{T+5}, 4, v{V_TRA}", "transpose address: line*64 + granule*16")
    i(f"v_bfe_u32 v{T+7}, v{V_LANE}, 2, 1")
    i(f"v_lshl_add_u32 v{V_PUB}, v{T+7}, 11, v{V_TRA}")
    i(f"v_bfe_u32 v{T+7}, v{V_LANE}, 3, 1")
    i(f"v_lshl_add_u32 v{V_PUB}, v{T+7}, 13, v{V_PUB}", "publish address: + copy")
    i(f"v_lshlrev_b32 v{T+6}, 8, v{T+6}")
    i(f"v_lshl_add_u32 v{V_ATOM}, v{T}, 2, v{T+6}", "atomic address: line*256 + (l&15)*4")
    i("s_cmp_eq_u32 s3, 0")
    i("s_cbranch_scc1 L_ctl")
    if o.pads & 2:
        a.c("waves 1-3 touch the store code while their loads fly")
        i("s_cmp_gt_u32 s3, 3")
        i("s_cbranch_scc1 L_now")
        i("s_mov_b64 exec, 0")
        i("s_cmp_eq_u32 s3, 2")
        i("s_cbranch_scc1 L_padD")
        i("s_cmp_eq_u32 s3, 3")
        i("s_cbranch_scc1 L_padE")
        i("s_branch L_padC")
        a("L_back2:")
        i("s_mov_b64 exec, -1")
    i("s_branch L_now")
    a("L_exit:")
    i("s_endpgm")
    a("L_ctl:")
    a.c("wave 0: weights, flag and hand-off addresses (the extra loads only make its counted waits stricter)")
    i("s_load_dwordx4 s[4:7], s[0:1], 8", "w_down, w_up")
    i("s_movk_i32 s34, 1152")
    i("s_mov_b32 s35, 0x00020000")
    i("s_movk_i32 s38, 1152")
    i("s_mov_b32 s39, 0x00020000")
    for r in range(21):
        i(f"v_mov_b32 v{V_WD+r}, 0")
    i(f"v_and_b32 v{T+1}, 31, v0")
    i(f"v_lshrrev_b32 v{T+4}, 5, v0")
    i(f"v_mul_u32_u24 v{T+2}, 36, v{T+1}")
    i(f"v_mad_u32_u24 v{T+2}, v{T+4}, 6, v{T+2}")
    i(f"v_lshlrev_b32 v{T+3}, 1, v0")
    i("s_waitcnt lgkmcnt(0)")
    i("s_mov_b64 s[32:33], s[4:5]")
    i("s_mov_b64 s[36:37], s[6:7]")
    pad("L_padA", "L_back1") if o.pads & 1 else None
    for ii in range(3):
        for jj in range(3):
            i(f"buffer_load_short_d16_hi v{V_WD+3*ii+jj}, v{T+2}, s[32:35], 0 offen offset:{12*ii+2*jj}")
    for j in range(6):
        for h in range(2):
            i(f"buffer_load_short_d16_hi v{V_WU+2*j+h}, v{T+3}, s[36:39], 0 offen offset:{192*j+128*h}")
    i("s_mov_b64 exec, 1")
    i(f"buffer_load_dword v{V_FLAG}, off, s[28:31], 0 sc1", "zeroing-done flag")
    i("s_mov_b64 exec, -1")
    i("s_mov_b32 s46, 0x88888888")
    i("s_mov_b32 s47, s46")
    i(f"s_mov_b32 s51, {f2u(float(NWG // R)):#x}", "WGs per replica, as float")
    i("s_mov_b32 s50, 0x100000", "spin budget")
    a("L_now:")
    if o.otouch:
        a.c("wave 3 touches the pages of out this WG will write (address translation warm-up; the value is unused)")
        i(f"s_cmp_lg_u32 s3, {o.otouch}")
        i("s_cbranch_scc1 L_now2")
        i(f"v_mul_lo_u32 v{T}, v{V_LANE}, s55")
        i("s_waitcnt lgkmcnt(0)")
        i("s_mov_b32 exec_hi, 0")
        i(f"buffer_load_dword v{T+1}, v{T}, s[20:23], s41 offen nt")
        i("s_mov_b32 exec_hi, -1")
        a("L_now2:")
    for k in range(L):
        if k % o.wgrp == 0:
            i(f"s_waitcnt vmcnt({L - k - o.wgrp})")
        i(f"v_mfma_f32_16x16x32_bf16 v[{V_D}:{V_D+3}], v[{V_A}:{V_A+3}], {dreg(k)}, v[{V_D}:{V_D+3}]")
    stamp(3)
    if o.stamps:
        i("s_mov_b32 s68, 0")
        if o.x9 == "atom":
            i("s_mov_b32 s78, 0")
    i("s_mov_b32 exec_lo, 0x0fff0fff")
    i("s_mov_b32 exec_hi, 0")
    i("s_cmp_lg_u32 s3, 0")
    i("s_nop 4")
    i(f"ds_write_b128 v{V_WRA}, v[{V_D}:{V_D+3}]")
    i("s_mov_b64 exec, -1")
    i("s_cbranch_scc0 L_ctl2")
    i("s_waitcnt lgkmcnt(0)")
    i("s_barrier")
    i("s_branch L_wait2")
    a("L_flagspin:")
    a.c("the zeroing-done flag was not up yet when this wave read it")
    i(f"buffer_load_dword v{V_FLAG}, off, s[28:31], 0 sc1")
    i("s_sub_u32 s50, s50, 1")
    i("s_cbranch_scc1 L_flagok")
    i("s_waitcnt vmcnt(0)")
    a("L_ctl2:")
    i(f"v_readfirstlane_b32 s43, v{V_FLAG}")
    i("s_cmp_eq_u32 s43, 0")
    i("s_cbranch_scc1 L_flagspin")
    a("L_flagok:")
    pad("L_padB", "L_back1") if o.pads & 1 else None
    a.c("replica = 2*q + bit 3 of the id; q depends on the id and the flag word only, so it holds 64 WGs")
    if near:
        i("s_getreg_b32 s54, hwreg(HW_REG_XCC_ID, 0, 3)")
        i("s_lshr_b32 s42, s43, 1", "XCC of WG 0")
        i("s_add_u32 s42, s42, s2")
        i("s_lshr_b32 s43, s43, 2")
        i("s_xor_b32 s42, s42, s43", "bit 2: side the id is expected on ^ side of region 0")
        i("s_xor_b32 s52, s54, s43")
        i("s_bfe_u32 s42, s42, 0x10002")
        i("s_bfe_u32 s52, s52, 0x10002")
        i("s_and_b32 s53, s54, 1")
    else:
        i("s_bfe_u32 s42, s2, 0x10002")
        i("s_bfe_u32 s52, s2, 0x10001")
        i("s_and_b32 s53, s2, 1")
    i("s_bfe_u32 s43, s2, 0x10003")
    i("s_lshl2_add_u32 s48, s42, s43")
    i("s_lshl_b32 s48, s48, 11", "accumulators: q*8192 + sub*2048")
    i(f"s_add_u32 s49, s48, {4*LS}")
    i("s_lshl1_add_u32 s56, s42, s43")
    i("s_lshl_b32 s56, s56, 9")
    i("s_addk_i32 s56, 4096", "published line: 4096 + replica*512 (+ copy)")
    i("s_add_u32 s57, s56, 256")
    i("s_lshl2_add_u32 s52, s52, s53")
    i("s_lshl_b32 s52, s52, 11")
    i("s_addk_i32 s52, 4096", "polled copy: q*8192 + 4096 + sub*2048")
    i("s_add_u32 s53, s52, 1024")
    i("s_mov_b32 s43, 0x36800000", "2^-18 (1/pixels) folded into w_down")
    for r in range(9):
        i(f"v_mul_f32 v{V_WD+r}, s43, v{V_WD+r}")
    i("s_mov_b32 s42, 0xbfb8aa3b", "-log2(e)")
    i("s_waitcnt lgkmcnt(0)")
    i("s_barrier")
    for k in range(W):
        i(f"ds_read2st64_b32 v[{Q+2*k}:{Q+2*k+1}], v{V_RDA} offset0:{LDS_SLOT//256+2*k} offset1:{LDS_SLOT//256+2*k+1}")
    S0, S1 = T, T + 1
    step = 1
    while step < W:
        for k in range(0, W, 2 * step):
            if step == 1:
                i(f"s_waitcnt lgkmcnt({W-2-k})")
            dst = T + 2 if step * 2 >= W else Q + 2 * k
            i(f"v_pk_add_f32 v[{dst}:{dst+1}], v[{Q+2*k}:{Q+2*k+1}], v[{Q+2*(k+step)}:{Q+2*(k+step)+1}]")
        step *= 2
    i(f"v_cndmask_b32 v{S0}, v{T+2}, 1.0, s[46:47]")
    i(f"v_cndmask_b32 v{S1}, v{T+3}, 1.0, s[46:47]")
    i(f"buffer_atomic_add_f32 v{S0}, v{V_ATOM}, s[24:27], s48 offen sc0")
    i(f"buffer_atomic_add_f32 v{S1}, v{V_ATOM}, s[24:27], s49 offen sc0")
    stamp(4)
    i(f"v_cndmask_b32 v{T+2}, v{T+2}, 1.0, s[46:47]")
    i(f"v_cndmask_b32 v{T+3}, v{T+3}, 1.0, s[46:47]")
    i("s_waitcnt vmcnt(1)")
    i(f"v_add_f32 v{T+2}, v{T+2}, v{S0}")
    i("s_waitcnt vmcnt(0)")
    i(f"v_add_f32 v{T+3}, v{T+3}, v{S1}")
    x9("atom")
    a.c("transpose through LDS: lane (line, copy, granule) gets one whole 16-byte granule")
    i(f"ds_write2st64_b32 v{V_L4}, v{T+2}, v{T+3} offset0:0 offset1:1")
    i(f"ds_read_b128 v[{P}:{P+3}], v{V_TRA}")
    i(f"ds_read_b128 v[{P+4}:{P+7}], v{V_TRA} offset:256")
    i("s_waitcnt lgkmcnt(1)" if not o.stamps else "s_waitcnt lgkmcnt(0)")
    i(f"v_cmp_eq_f32 vcc, s51, v{P+3}")
    i("s_and_b64 exec, vcc, vcc")
    i("s_cbranch_scc0 L_nopubA")
    i(f"buffer_store_dwordx4 v[{P}:{P+3}], v{V_PUB}, s[24:27], s56 offen sc1")
    a("L_nopubA:")
    i("s_mov_b64 exec, -1")
    i("s_waitcnt lgkmcnt(0)")
    i(f"v_cmp_eq_f32 vcc, s51, v{P+7}")
    i("s_and_b64 exec, vcc, vcc")
    i("s_cbranch_scc0 L_nopubB")
    i(f"buffer_store_dwordx4 v[{P+4}:{P+7}], v{V_PUB}, s[24:27], s57 offen sc1")
    a("L_nopubB:")
    i("s_mov_b64 exec, -1")
    a.c("poll the published replica sums")
    a("L_poll:")
    if o.pollsleep:
        i(f"s_sleep {o.pollsleep}")
    i(f"buffer_load_dwordx4 v[{Q}:{Q+3}], v{V_POLL}, s[24:27], s52 offen sc1")
    i(f"buffer_load_dwordx4 v[{Q+4}:{Q+7}], v{V_POLL}, s[24:27], s53 offen sc1")
    i("s_sub_u32 s50, s50, 1")
    i("s_cbranch_scc1 L_done")
    i("s_waitcnt vmcnt(1)")
    i(f"v_cmp_eq_f32 vcc, s51, v{Q+3}")
    i("s_waitcnt vmcnt(0)")
    i(f"v_cmp_eq_f32 s[4:5], s51, v{Q+7}")
    i("s_and_b64 vcc, vcc, s[4:5]")
    i("s_cmp_eq_u64 vcc, -1")
    i("s_cbranch_scc0 L_poll")
    a("L_done:")
    stamp(5)
    i(f"v_pk_add_f32 v[{P}:{P+1}], v[{Q}:{Q+1}], v[{Q+4}:{Q+5}]")
    i(f"v_pk_add_f32 v[{P+4}:{P+5}], v[{Q}:{Q+1}], v[{Q+4}:{Q+5}]")
    i(f"v_add_f32 v{P+2}, v{Q+2}, v{Q+6}")
    i(f"v_add_f32 v{P+6}, v{Q+2}, v{Q+6}")
    i(f"v_permlane32_swap_b32 v{P+4}, v{P}")
    i(f"v_permlane32_swap_b32 v{P+5}, v{P+1}")
    i(f"v_permlane32_swap_b32 v{P+6}, v{P+2}")
    i(f"v_pk_add_f32 v[{P}:{P+1}], v[{P}:{P+1}], v[{P+4}:{P+5}]")
    i(f"v_add_f32 v{P+2}, v{P+2}, v{P+6}")
    for r in range(3):
        i(f"v_cvt_pk_bf16_f32 v{P+r}, 0, v{P+r}", "sum rounded to bf16, left in the high half" if r == 0 else None)
    H = P + 4
    for jj in range(3):
        i(f"v_mul_f32 v{H+jj}, v{P}, v{V_WD+jj}")
    for ii in (1, 2):
        for jj in range(3):
            i(f"v_fmac_f32 v{H+jj}, v{P+ii}, v{V_WD+3*ii+jj}")
    for dpp in ("quad_perm:[1,0,3,2]", "quad_perm:[2,3,0,1]", "row_half_mirror", "row_mirror"):
        for jj in range(3):
            i(f"v_add_f32_dpp v{H+jj}, v{H+jj}, v{H+jj} {dpp} row_mask:0xf bank_mask:0xf")
    for jj in range(3):
        i(f"v_add_f32_dpp v{P}, v{H+jj}, v{H+jj} row_bcast:15 row_mask:0xa bank_mask:{1 << jj:#x}",
          "h[j] -> lane 16 + 4*(j%3) + 32*(j/3)" if jj == 0 else None)
    i(f"v_cvt_pk_bf16_f32 v{H}, 0, v{P}", "h (bf16)")
    i(f"v_mul_f32 v{P}, s42, v{H}")
    i(f"v_exp_f32 v{P}, v{P}")
    i("s_nop 0")
    i(f"v_add_f32 v{P}, 1.0, v{P}")
    i(f"v_rcp_f32 v{P}, v{P}")
    i("s_nop 0")
    i(f"v_mul_f32 v{H}, v{H}, v{P}")
    i(f"v_cvt_pk_bf16_f32 v{H}, 0, v{H}", "silu(h) (bf16)")
    i("s_nop 0")
    for j in range(6):
        i(f"v_readlane_b32 s{8+j}, v{H}, {16 + 4*(j % 3) + 32*(j//3)}")
    Z = P
    sel = lambda j: "op_sel:[0,1,0] op_sel_hi:[1,1,1]" if j & 1 else "op_sel:[0,0,0] op_sel_hi:[1,0,1]"
    i(f"v_pk_mul_f32 v[{Z}:{Z+1}], v[{V_WU}:{V_WU+1}], s[8:9] op_sel:[0,0] op_sel_hi:[1,0]")
    for j in range(1, 6):
        sp = 8 + (j & ~1)
        i(f"v_pk_fma_f32 v[{Z}:{Z+1}], v[{V_WU+2*j}:{V_WU+2*j+1}], s[{sp}:{sp+1}], v[{Z}:{Z+1}] {sel(j)}")
    i(f"v_cvt_pk_bf16_f32 v{Z}, 0, v{Z}", "z (bf16)")
    i(f"v_cvt_pk_bf16_f32 v{Z+1}, 0, v{Z+1}")
    i(f"v_pk_mul_f32 v[{Z}:{Z+1}], v[{Z}:{Z+1}], s[42:43] op_sel:[0,0] op_sel_hi:[1,0]")
    i(f"v_exp_f32 v{Z}, v{Z}")
    i(f"v_exp_f32 v{Z+1}, v{Z+1}")
    i("s_nop 0")
    i(f"v_pk_add_f32 v[{Z}:{Z+1}], v[{Z}:{Z+1}], 1.0 op_sel_hi:[1,0]")
    i(f"v_rcp_f32 v{Z}, v{Z}")
    i(f"v_rcp_f32 v{Z+1}, v{Z+1}")
    i(f"v_cvt_pk_bf16_f32 v{Z}, 0, v{Z}", "sigmoid (bf16)")
    i(f"v_cvt_pk_bf16_f32 v{Z+1}, 0, v{Z+1}")
    i(f"ds_write2st64_b32 v{V_L4}, v{Z}, v{Z+1} offset0:{LDS_SCALE//256} offset1:{LDS_SCALE//256+1}")
    i("s_waitcnt lgkmcnt(0)")
    i("s_barrier")
    if o.reset:
        i("s_cmp_lg_u32 s2, 0")
        i("s_cbranch_scc1 L_go")
        a.c("every WG has read the flag by now: leave d_debug as it was found")
        i(f"v_mov_b32 v{T}, 0")
        i("s_mov_b64 exec, 1")
        i(f"buffer_store_dword v{T}, off, s[28:31], 0 sc1")
        i("s_mov_b64 exec, -1")
    i("s_branch L_go")
    a("L_zero:")
    a.c("WG 0, wave 0: zero the 16 KiB hand-off area, then raise the flag")
    i("s_load_dwordx2 s[28:29], s[0:1], 32", "debug")
    if near:
        i("s_load_dword s6, s[24:25], 16384 glc", "first touch of the two lines timed below")
        i("s_load_dword s7, s[24:25], 24576 glc")
    i("s_mov_b32 s26, 0x10000000")
    i("s_mov_b32 s27, 0x00020000")
    i("s_movk_i32 s30, 256")
    i("s_mov_b32 s31, 0x00020000")
    i("s_mov_b64 s[44:45], exec")
    i("s_mov_b64 exec, -1")
    i(f"v_lshlrev_b32 v{V_POLL}, 4, v0")
    for r in range(4):
        i(f"v_mov_b32 v{P+r}, 0")
    i("s_mov_b32 s42, 0")
    a("L_zloop:")
    for j in range(4):
        off = f" offset:{1024*j}" if j else ""
        i(f"buffer_store_dwordx4 v[{P}:{P+3}], v{V_POLL}, s[24:27], s42 offen{off} sc1")
    i("s_addk_i32 s42, 4096")
    i("s_cmpk_lt_u32 s42, 16384")
    i("s_cbranch_scc1 L_zloop")
    i("s_waitcnt lgkmcnt(0)")
    if near:
        a.c("which of the two 8 KiB regions is closer to this die (speed only): timed uncached scalar reads")
        for h in range(2):
            i("s_memtime s[8:9]")
            i("s_waitcnt lgkmcnt(0)")
            i(f"s_load_dword s6, s[24:25], {16384 + 8192*h} glc")
            i("s_waitcnt lgkmcnt(0)")
            i("s_memtime s[10:11]")
            i("s_waitcnt lgkmcnt(0)")
            i(f"s_sub_u32 s{4+h}, s10, s8")
        if o.stamps:
            i("s_lshl_b32 s92, s5, 16")
            i("s_or_b32 s92, s92, s4")
        i("s_getreg_b32 s6, hwreg(HW_REG_XCC_ID, 0, 3)")
        i("s_cmp_lt_u32 s4, s5")
        i("s_cselect_b32 s4, 0, 4")
        i("s_xor_b32 s4, s4, s6")
        i("s_and_b32 s4, s4, 4", "bit 2: side of region 0")
        i("s_lshl1_add_u32 s4, s4, s6")
        i("s_lshl1_add_u32 s4, s4, 1", "flag = 1 | XCC << 1 | side << 4")
        i(f"v_mov_b32 v{T+4}, s4")
    else:
        i(f"v_mov_b32 v{T+4}, 1")
    i("s_mov_b64 exec, 1")
    i("s_waitcnt vmcnt(0)")
    i(f"buffer_store_dword v{T+4}, off, s[28:31], 0 sc1")
    if o.stamps:
        i("s_memrealtime s[94:95]")
    i("s_mov_b64 exec, s[44:45]")
    i("s_branch L_loads")
    if o.split:
        a(".p2align 12")
    a("L_wait2:")
    pad("L_padC", "L_padF") if o.pads & 2 else None
    i("s_barrier")
    a("L_go:")
    i(f"ds_read_b128 v[{V_SC}:{V_SC+3}], v{V_SCA}")
    i(f"ds_read_b128 v[{V_SC+4}:{V_SC+7}], v{V_SCA} offset:16")
    i("s_mov_b64 exec, s[44:45]")
    i("s_mov_b32 s40, s41")
    stamp(6)
    i("s_mov_b32 s43, 0xffff0000")
    if o.patO:
        if o.patby == "xcc":
            i("s_getreg_b32 vcc_lo, hwreg(HW_REG_XCC_ID, 0, 1)")
        else:
            i("s_lshr_b32 vcc_lo, s3, 2")
        i("s_mov_b32 vcc_hi, 0")
    for k in range(L):
        d = V_DATA + 4 * k
        for r in range(4):
            i(f"v_lshlrev_b32 v{T+2*r}, 16, v{d+r}")
            i(f"v_and_b32 v{T+2*r+1}, s43, v{d+r}")
        if k == 0:
            i("s_waitcnt lgkmcnt(0)")
        for r in range(4):
            i(f"v_pk_mul_f32 v[{T+2*r}:{T+2*r+1}], v[{T+2*r}:{T+2*r+1}], v[{V_SC+2*r}:{V_SC+2*r+1}]")
        for r in range(4):
            i(f"v_cvt_pk_bf16_f32 v{d+r}, v{T+2*r}, v{T+2*r+1}")
        if o.sdepth and k >= o.sdepth:
            i(f"s_waitcnt vmcnt({o.sdepth - 1})")
        if o.pat:
            fl = {"s": "sc1", "n": "nt", "p": "", "w": "nt sc1", "0": "sc0", "z": "sc0 sc1"}[o.pat[k * len(o.pat) // L] if not o.patrep else o.pat[k % len(o.pat)]]
        else:
            fl = stf2 if k < o.nst2 or k >= L - o.nst2e else stf
        FL = {"s": "sc1", "n": "nt", "p": "", "w": "nt sc1"}
        if o.patO and o.patO[k * len(o.patO) // L] != o.pat[k * len(o.pat) // L]:
            i(f"s_cbranch_vccnz L_alt{k}")
            i(f"buffer_store_dwordx4 v[{d}:{d+3}], v{V_OFF}, s[20:23], s40 offen {fl}".rstrip())
            i(f"s_branch L_nx{k}")
            a(f"L_alt{k}:")
            i(f"buffer_store_dwordx4 v[{d}:{d+3}], v{V_OFF}, s[20:23], s40 offen {FL[o.patO[k * len(o.patO) // L]]}".rstrip())
            a(f"L_nx{k}:")
            if k != L - 1:
                i("s_add_u32 s40, s40, s55")
        else:
            mem("buffer_store_dwordx4", k, f"v[{d}:{d+3}]", "s[20:23]", fl)
        if o.x9 == f"st{k}":
            i("s_waitcnt vmcnt(0)")
            i("s_memrealtime s[78:79]")
        if o.pads & 2 and k in (8, 17, 26):
            pad({8: "L_padD", 17: "L_padE", 26: "L_padF"}[k], "L_back2")
        if o.sbar and k % o.sbar == o.sbar - 1 and k != L - 1:
            i("s_barrier")
    if o.stamps:
        stamp(7)
        i("s_waitcnt vmcnt(0)")
        stamp(8)
        i("s_memtime s[90:91]")
        i("s_mov_b64 exec, -1")
        i("s_getreg_b32 s42, hwreg(HW_REG_HW_ID)")
        i("s_getreg_b32 s43, hwreg(HW_REG_XCC_ID)")
        i("s_waitcnt lgkmcnt(0)")
        i(f"v_mov_b32 v{V_ZA}, 0")
        for k in range(nstamp[0]):
            i(f"v_writelane_b32 v{V_ZA}, s{60+2*k}, {k}")
        i(f"v_writelane_b32 v{V_ZA}, s78, 9")
        i(f"v_writelane_b32 v{V_ZA}, s92, 10")
        i(f"v_writelane_b32 v{V_ZA}, s94, 13")
        i("s_sub_u32 s90, s90, s88")
        i(f"v_writelane_b32 v{V_ZA}, s90, 11")
        i("s_sub_u32 s50, 0x100000, s50")
        i(f"v_writelane_b32 v{V_ZA}, s50, 12")
        i(f"v_writelane_b32 v{V_ZA}, s42, 14")
        i(f"v_writelane_b32 v{V_ZA}, s43, 15")
        i("s_lshl_b32 s42, s2, 4")
        i("s_add_u32 s42, s42, s3")
        i("s_lshl_b32 s42, s42, 6")
        i("s_add_u32 s42, s42, 0x4000000")
        i("s_mov_b64 exec, 0xffff")
        i(f"buffer_store_dword v{V_ZA}, v{V_L4}, s[24:27], s42 offen")
        if o.probe:
            pa, pb, pk, pw = [int(x) for x in o.probe.split(",")]
            i(f"s_cmp_lg_u32 s3, {o.probewave}")
            i("s_cbranch_scc1 L_end")
            i(f"s_cmp_lg_u32 s2, {pw}")
            i("s_cbranch_scc1 L_end")
            i(f"s_sub_u32 s42, s{60+2*pb}, s{60+2*pa}")
            i(f"s_mul_i32 s42, s42, {pk}")
            i("s_add_u32 s42, s42, 4000")
            i("s_min_u32 s42, s42, 20000")
            a("L_probe:")
            i("s_memrealtime s[50:51]")
            i("s_waitcnt lgkmcnt(0)")
            i("s_sub_u32 s43, s50, s60")
            i("s_cmp_lt_u32 s43, s42")
            i("s_cbranch_scc1 L_probe")
    a("L_end:")
    i("s_endpgm")
    a(f""".section .rodata,"a"
.p2align 6
.amdhsa_kernel {KNAME}
  .amdhsa_next_free_vgpr {NV}
  .amdhsa_next_free_sgpr {96 if o.stamps else 64}
  .amdhsa_accum_offset {(NV + 3) // 4 * 4}
  .amdhsa_group_segment_fixed_size 0
  .amdhsa_kernarg_size 48
  .amdhsa_user_sgpr_count 2
  .amdhsa_user_sgpr_kernarg_segment_ptr 1
  .amdhsa_system_sgpr_workgroup_id_x 1
  .amdhsa_float_denorm_mode_32 3
.end_amdhsa_kernel""")
    return a.text()


def main():
    ap = argparse.ArgumentParser()
    ap.add_argument("-o", default="-")
    ap.add_argument("--xcdswz", type=int, default=2)
    ap.add_argument("--otouch", type=int, default=0)
    ap.add_argument("--sdepth", type=int, default=0)
    ap.add_argument("--reset", type=int, default=1)
    ap.add_argument("--pat", default="sn")
    ap.add_argument("--patrep", type=int, default=0)
    ap.add_argument("--patO", default="")
    ap.add_argument("--patby", default="xcc")
    ap.add_argument("--lpat", default="")
    ap.add_argument("--ldepth", type=int, default=0)
    ap.add_argument("--run", type=int, default=1)
    ap.add_argument("--runw", type=int, default=0)
    ap.add_argument("--rot", type=lambda x: int(x, 0), default=0)
    ap.add_argument("--pollsleep", type=int, default=0)
    ap.add_argument("--half", type=int, default=0)
    ap.add_argument("--near", type=int, default=1)
    ap.add_argument("--pads", type=int, default=2)
    ap.add_argument("--split", type=int, default=1)
    ap.add_argument("--wgrp", type=int, default=1)
    ap.add_argument("--sbar", type=int, default=0)
    ap.add_argument("--ldflags", default="nt")
    ap.add_argument("--stflags", default="nt")
    ap.add_argument("--stflags2", default="nt+sc1")
    ap.add_argument("--nst2", type=int, default=16)
    ap.add_argument("--nst2e", type=int, default=0)
    ap.add_argument("--stamps", type=int, default=0)
    ap.add_argument("--probe", default="")
    ap.add_argument("--probewave", type=int, default=0)
    ap.add_argument("--x9", default="")
    o = ap.parse_args()
    t = gen(o)
    if o.o == "-":
        sys.stdout.write(t)
    else:
        open(o.o, "w").write(t)


if __name__ == "__main__":
    main()
```

```python
import argparse
import struct
import sys

XBYTES = 512 * 512 * 96 * 2
NWG = 256
KNAME = "standalone__se_block__vision_kernel"

HEADER = """; Kernarg layout for this problem (48 bytes, ptrs only, base s[0:1]):
;   offset   0: d_in[0] x  shape=(1, 512, 512, 96) dtype=bfloat16 strides=(50331648, 98304, 192, 2) contiguous=True
;   offset   8: d_in[1] w_down  shape=(96, 6) dtype=bfloat16 strides=(12, 2) contiguous=True
;   offset  16: d_in[2] w_up  shape=(6, 96) dtype=bfloat16 strides=(192, 2) contiguous=True
;
;  2. wave 0 adds the WG sums to one of 4 replicas in d_ws with returning float atomics on
;     16-byte granules {3 sums, count}; the WG that sees the final count publishes the granule
;  4. all waves scale their registers and store
; WGs 0-15 zero the hand-off area first and count that in a flag word in d_debug.
"""


def f2u(x):
    return struct.unpack("<I", struct.pack("<f", x))[0]


class Asm:
    def __init__(self):
        self.l = []

    def __call__(self, s):
        for line in s.strip("\n").split("\n"):
            self.l.append(line)

    def i(self, s, c=None):
        self.l.append("    " + s + (f"    ; {c}" if c else ""))

    def c(self, s):
        self.l.append("    ; " + s)

    def text(self):
        return "\n".join(self.l) + "\n"


def gen(o):
    W, L, UNIT, R, LS = 8, 32, 768, o.R, 256
    NZ = 4 * R
    PUB0 = 4096 if R == 4 else 16384
    SUBS = R * 512
    near = o.near
    a = Asm()
    i = a.i
    LDS_TR, LDS_SCALE, LDS_SLOT = 0, 512, 1024
    lds = LDS_SLOT + W * 512
    a(HEADER)
    a(f"; @launch grid=({NWG},1,1) block=({W*64},1,1) lds={lds}")
    a(f""".amdgcn_target "amdgcn-amd-amdhsa--gfx950"
.text
.globl {KNAME}
.p2align 12
.p2align 8
.type {KNAME},@function
{KNAME}:""")

    V_OFF, V_A, V_D, V_LANE, V_POLL, V_ATOM, V_FLAG, V_L4, V_SCA = 1, 2, 6, 10, 11, 12, 13, 14, 15
    V_WRA, V_RDA, V_TRA, V_PUB, V_T, V_ZA, V_WD, V_WU, V_SC, V_Q, V_DATA = 16, 17, 18, 19, 20, 30, 31, 40, 52, 60, 76
    V_WA = 28
    NV = V_DATA + 4 * L
    dreg = lambda k: f"v[{V_DATA+4*k}:{V_DATA+4*k+3}]"
    T, P, Q = V_T, V_SC, V_Q

    nstamp = [0]

    def stamp(k):
        if o.stamps and not (o.cyc and k >= 2):
            nstamp[0] = max(nstamp[0], k + 1)
            i(f"s_memrealtime s[{60+2*k}:{61+2*k}]")

    def cyc(k):
        if o.cyc:
            i(f"s_memtime s[{64+2*k}:{65+2*k}]")

    def x9(tag):
        if o.x9 == tag:
            i("s_memrealtime s[78:79]")

    ldf = o.ldflags.replace("+", " ")
    stf = o.stflags.replace("+", " ")
    stf2 = o.stflags2.replace("+", " ")
    u_stride = NWG * W * UNIT

    run = o.run
    u_stride *= run

    def mem(op, k, reg, srd, flags):
        j = k % run
        off = f" offset:{j * (UNIT if o.runw else 0)}" if j and o.runw else ""
        i(f"{op} {reg}, v{V_OFF}, {srd}, s40 offen{off} {flags}".rstrip())
        if k != L - 1:
            if run > 1 and not o.runw:
                i(f"s_add_u32 s40, s40, {'s58' if j != run - 1 else 's55'}")
            elif j == run - 1:
                i("s_add_u32 s40, s40, s55")
            if o.rot:
                i("s_cmp_ge_u32 s40, s18")
                i("s_cselect_b32 s58, s18, 0")
                i("s_sub_u32 s40, s40, s58")

    def pad(name, target):
        if o.pads:
            a(f"{name}:")
            i(f"s_cbranch_execz {target}", "landing pad of the instruction-cache warm-up hops (EXEC = 0 only there)")

    def zero_block():
        a("L_zero:")
        a.c(f"wave {o.duty} of WGs 0-{NZ-1} zeroes 1 KiB each of the {NZ} KiB hand-off area")
        if o.prio:
            i("s_setprio 3", "ahead of the older waves' loads")
        i("s_mov_b32 s26, 0x10000000")
        i("s_mov_b32 s27, 0x00020000")
        i("s_mov_b64 s[44:45], exec")
        i("s_mov_b64 exec, -1")
        i(f"v_and_b32 v{V_LANE}, 63, v0")
        i(f"v_lshlrev_b32 v{V_POLL}, 4, v{V_LANE}")
        for r in range(4):
            i(f"v_mov_b32 v{P+r}, 0")
        i("s_lshl_b32 s43, s2, 10")
        i(f"buffer_store_dwordx4 v[{P}:{P+3}], v{V_POLL}, s[24:27], s43 offen sc1")
        if near:
            i("s_cmp_lg_u32 s2, 0")
            i("s_cbranch_scc1 L_zero2")
            a.c("WG 0 also writes the 16 spare lines it times below")
            i(f"v_lshrrev_b32 v{T}, 3, v{V_LANE}")
            i(f"v_lshlrev_b32 v{T}, 12, v{T}")
            i(f"v_lshl_add_u32 v{T}, v{V_LANE}, 9, v{T}")
            i("s_mov_b64 exec, 0xffff")
            i(f"s_mov_b32 s43, {NZ * 1024}")
            i(f"buffer_store_dwordx4 v[{P}:{P+3}], v{T}, s[24:27], s43 offen sc1")
            a("L_zero2:")
        if o.early:
            i("s_mov_b64 exec, s[44:45]")
            i("s_branch L_loads")
            a("L_flag:")
            i("s_mov_b64 s[44:45], exec")
        else:
            i("s_mov_b64 exec, -1")
        i("s_load_dwordx2 s[28:29], s[0:1], 32", "debug")
        i("s_movk_i32 s30, 256")
        i("s_mov_b32 s31, 0x00020000")
        i("s_movk_i32 s4, 0x100")
        i("s_waitcnt vmcnt(0) lgkmcnt(0)", "zero store acknowledged")
        if near:
            i("s_cmp_lg_u32 s2, 0")
            i("s_cbranch_scc1 L_flag2")
            a.c("Addresses that differ in bit 13 lie behind different I/O dies.  Read just-written spare lines of both")
            a.c("halves with uncached scalar loads, in both orders: the closer half issued first leaves a gap before the")
            a.c("other one arrives.  This only picks where the hand-off lines of a WG live (speed): s4/s5 end up as one")
            a.c("bit of the flag word, and either value of that bit gives a valid partition of the WGs.")
            i(f"s_load_dword s14, s[24:25], {NZ * 1024} glc", "address translation")
            if o.warm2:
                i(f"s_load_dword s15, s[24:25], {NZ * 1024 + 8192} glc")
            i("s_waitcnt lgkmcnt(0)")
            if o.gap:
                n = o.gap
                for rnd, hs in enumerate(((0, 1), (1, 0))):
                    for h in hs:
                        for jj in range(n):
                            line = (jj + rnd * n) % 8
                            i(f"s_load_dword s{12 + (jj & 3)}, s[24:25], {NZ * 1024 + 8192*h + 512 * line} glc")
                    i(f"s_waitcnt lgkmcnt({n})")
                    i("s_memtime s[8:9]")
                    i("s_waitcnt lgkmcnt(0)")
                    i("s_memtime s[10:11]")
                    i("s_waitcnt lgkmcnt(0)")
                    i(f"s_sub_u32 s{5 - rnd}, s10, s8")
            elif o.abba:
                n = o.abba
                for rnd, h in enumerate((0, 1, 1, 0)):
                    i("s_memtime s[8:9]")
                    i("s_waitcnt lgkmcnt(0)")
                    for jj in range(n):
                        i(f"s_load_dword s{12 + (jj & 3)}, s[24:25], {NZ * 1024 + 8192*h + 512 * (jj + n * (rnd >> 1))} glc")
                    i("s_waitcnt lgkmcnt(0)")
                    i("s_memtime s[10:11]")
                    i("s_waitcnt lgkmcnt(0)")
                    if rnd < 2:
                        i(f"s_sub_u32 s{4+h}, s10, s8")
                    else:
                        i("s_sub_u32 s10, s10, s8")
                        i(f"s_add_u32 s{4+h}, s{4+h}, s10")
            elif o.race:
                n = o.race
                B0 = 64 if not o.stamps else 4
                regs = [(64 + 2 * j, 65 + 2 * j) for j in range(n)] if not o.stamps else [(8 + 2*j, 9 + 2*j) if j < 3 else (46 + 2*(j-3), 47 + 2*(j-3)) for j in range(n)]
                for ra, rb in regs:
                    i(f"s_mov_b32 s{ra}, 1")
                    i(f"s_mov_b32 s{rb}, 1")
                for j, (ra, rb) in enumerate(regs):
                    order = ((ra, 0), (rb, 1)) if j % 2 == 0 else ((rb, 1), (ra, 0))
                    for r_, h in order:
                        i(f"s_load_dword s{r_}, s[24:25], {NZ * 1024 + 8192*h + 512 * j} glc")
                i(f"s_waitcnt lgkmcnt({o.racew})")
                i(f"s_add_u32 s4, s{regs[0][0]}, 0")
                i(f"s_add_u32 s5, s{regs[0][1]}, 0")
                for ra, rb in regs[1:]:
                    i(f"s_add_u32 s4, s4, s{ra}")
                    i(f"s_add_u32 s5, s5, s{rb}")
                i("s_waitcnt lgkmcnt(0)")
            else:
                for h in range(2):
                    i("s_memtime s[8:9]")
                    i("s_waitcnt lgkmcnt(0)")
                    for jj in range(o.npr):
                        i(f"s_load_dword s{12 + (jj & 3)}, s[24:25], {NZ * 1024 + 8192*h + 512 * jj} glc")
                    i("s_waitcnt lgkmcnt(0)")
                    i("s_memtime s[10:11]")
                    i("s_waitcnt lgkmcnt(0)")
                    i(f"s_sub_u32 s{4+h}, s10, s8")
            if o.stamps:
                i("s_lshl_b32 s92, s5, 16")
                i("s_or_b32 s92, s92, s4")
            i("s_getreg_b32 s6, hwreg(HW_REG_XCC_ID, 0, 3)")
            i("s_cmp_lt_u32 s4, s5")
            i("s_cselect_b32 s4, 0, 4")
            i("s_xor_b32 s4, s4, s6")
            i("s_and_b32 s4, s4, 4", "bit 2: side of half 0")
            i("s_lshl1_add_u32 s4, s4, s6")
            i("s_lshl1_add_u32 s4, s4, 0x100", "XCC << 1 | side << 4")
            a("L_flag2:")
        i(f"v_mov_b32 v{T+4}, s4")
        i("s_mov_b64 exec, 1")
        i(f"buffer_atomic_add v{T+4}, off, s[28:31], 0", "flag word: bits 8+ count the zeroing WGs")
        if o.stamps:
            i("s_memrealtime s[94:95]")
        i("s_mov_b64 exec, s[44:45]")
        if o.prio == 1:
            i("s_setprio 0")
        i("s_branch L_loads2" if o.early else "s_branch L_loads")

    stamp(0)
    if o.stamps:
        i("s_memtime s[88:89]")
    i("s_load_dwordx2 s[16:17], s[0:1], 0", "x")
    i("s_load_dwordx2 s[24:25], s[0:1], 40", "ws")
    i(f"v_lshrrev_b32 v{T}, 6, v0")
    i(f"v_and_b32 v{T+1}, 15, v0", "n = 16-byte chunk of the pixel (12 used)")
    i(f"v_readfirstlane_b32 s3, v{T}", "wave id")
    i(f"v_bfe_u32 v{T+2}, v0, 4, 2", "q = pixel of the 4")
    i(f"s_cmp_ge_u32 s2, {NWG}")
    i("s_cbranch_scc1 L_exit", "workgroups past the data exit")
    i(f"v_mul_u32_u24 v{V_OFF}, 192, v{T+2}")
    i(f"v_lshl_add_u32 v{V_OFF}, v{T+1}, 4, v{V_OFF}")
    if o.pads & 4:
        a.c("waves 4-7 touch the store code (second page) while the kernarg loads are under way")
        i("s_cmp_lt_u32 s3, 4")
        i("s_cbranch_scc1 L_back1")
        i("s_mov_b64 exec, 0")
        i("s_cmp_eq_u32 s3, 4")
        i("s_cbranch_scc1 L_padC")
        i("s_cmp_eq_u32 s3, 5")
        i("s_cbranch_scc1 L_padD")
        i("s_cmp_eq_u32 s3, 6")
        i("s_cbranch_scc1 L_padE")
        i("s_branch L_padF")
        a("L_back1:")
    if o.pads & 1:
        a.c("waves 6 and 7 touch the code further down while the kernarg loads are under way")
        i("s_cmp_lt_u32 s3, 6")
        i("s_cbranch_scc1 L_back1")
        i("s_mov_b64 exec, 0")
        i("s_cmp_eq_u32 s3, 6")
        i("s_cbranch_scc1 L_padA")
        i("s_branch L_padB")
        a("L_back1:")
    if o.xcdswz == 2:
        a.c("WGs with equal id mod 8 get neighbouring 6 KiB pieces (speed only)")
        i("s_and_b32 s42, s2, 7")
        i("s_bfe_u32 s43, s2, 0x10003")
        i("s_lshl1_add_u32 s42, s42, s43")
        i("s_andn2_b32 s43, s2, 15")
        i("s_or_b32 s42, s42, s43")
        i("s_lshl3_add_u32 s41, s42, s3")
    elif o.xcdswz > 2:
        g = o.xcdswz.bit_length() - 1
        i("s_and_b32 s42, s2, 7")
        i(f"s_bfe_u32 s43, s2, {3 | (g << 16):#x}")
        i(f"s_lshl_b32 s42, s42, {g}")
        i("s_or_b32 s42, s42, s43")
        i(f"s_andn2_b32 s43, s2, {(8 << g) - 1}")
        i("s_or_b32 s42, s42, s43")
        i("s_lshl3_add_u32 s41, s42, s3")
    elif run > 1 and not o.runw and not o.half:
        i(f"s_lshl_b32 s41, s2, {(W * run).bit_length() - 1}")
        i("s_add_u32 s41, s41, s3")
    else:
        i("s_lshl3_add_u32 s41, s2, s3")
    if run > 1 and not o.runw and (o.half or o.xcdswz):
        i("s_sub_u32 s41, s41, s3")
        i(f"s_mul_i32 s41, s41, {run}")
        i("s_add_u32 s41, s41, s3")
        if o.half:
            i("s_lshr_b32 s42, s3, 2")
            i(f"s_mul_i32 s42, s42, {4 * run - 4}")
            i("s_add_u32 s41, s41, s42")
    i(f"s_mulk_i32 s41, {UNIT * (run if o.runw else 1)}")
    if o.rot:
        i(f"s_bfe_u32 s42, s2, {o.rot}")
        i(f"s_mul_i32 s42, s42, {XBYTES >> (o.rot >> 16)}")
        i("s_add_u32 s41, s41, s42")
    i(f"s_mov_b32 s18, {XBYTES}")
    i("s_mov_b32 s19, 0x00020000")
    if run > 1 and not o.runw:
        st = W * UNIT // (2 if o.half else 1)
        i(f"s_movk_i32 s58, {st}")
        i(f"s_mov_b32 s55, {u_stride - (run - 1) * st}")
    else:
        i(f"s_mov_b32 s55, {u_stride}")
    i("s_mov_b32 exec_lo, 0x0fff0fff")
    i("s_mov_b32 s40, s41")
    i("s_mov_b32 exec_hi, exec_lo")
    i(f"s_lshr_b32 s42, s2, {NZ.bit_length() - 1}")
    if o.duty:
        i(f"s_xor_b32 s43, s3, {o.duty}")
        i("s_or_b32 s42, s42, s43")
    else:
        i("s_or_b32 s42, s42, s3")
    i("s_waitcnt lgkmcnt(0)")
    i("s_cbranch_scc0 L_zero")
    a("L_loads:")
    stamp(1)
    D = o.ldepth or L

    def load(k):
        lf = ldf
        if o.lpat:
            lf = {"s": "sc1", "n": "nt", "p": "", "w": "nt sc1", "0": "nt sc0"}[o.lpat[k % len(o.lpat)] if len(o.lpat) != 4 else o.lpat[k // 8]]
        mem("buffer_load_dwordx4", k, dreg(k), "s[16:19]", lf)

    def mfma(k):
        i(f"v_mfma_f32_16x16x32_bf16 v[{V_D}:{V_D+3}], v[{V_A}:{V_A+3}], {dreg(k)}, v[{V_D}:{V_D+3}]")

    for k in range(D):
        load(k)
        if o.early and k == o.early - 1:
            i("s_cmp_eq_u32 s42, 0")
            i("s_cbranch_scc1 L_flag")
            a("L_loads2:")
    if o.znear:
        i("s_branch L_setup")
        zero_block()
        a("L_setup:")
    if D == L:
        stamp(2)
    i("s_load_dwordx2 s[20:21], s[0:1], 24", "out")
    i("s_load_dwordx2 s[28:29], s[0:1], 32", "debug")
    i("s_mov_b32 s26, 0x10000000")
    i("s_mov_b32 s27, 0x00020000")
    i("s_movk_i32 s30, 256")
    i("s_mov_b32 s31, 0x00020000")
    i("s_mov_b64 s[44:45], exec")
    i("s_mov_b64 exec, -1")
    i("s_mov_b32 s22, s18")
    i("s_mov_b32 s23, 0x00020000")
    i(f"v_and_b32 v{V_LANE}, 63, v0")
    i(f"v_and_b32 v{T}, 15, v0", "A[i][k] = 1 where k%8 == i (i<8): sums the 4 pixels per channel")
    i(f"v_and_b32 v{T+1}, 1, v0")
    i(f"v_lshlrev_b32 v{T+1}, 4, v{T+1}")
    i(f"v_mov_b32 v{T+2}, 0x3f80")
    i(f"v_lshlrev_b32 v{T+1}, v{T+1}, v{T+2}")
    i(f"v_lshrrev_b32 v{T+2}, 1, v{T}")
    for r in range(4):
        i(f"v_cmp_eq_u32 vcc, {r}, v{T+2}")
        i(f"v_mov_b32 v{V_D+r}, 0")
        i("s_nop 0")
        i(f"v_cndmask_b32 v{V_A+r}, 0, v{T+1}, vcc")
    a.c("slot write address: wave*512 + (n/6)*256 + (n%6)*32 + (u&1)*16")
    i(f"v_bfe_u32 v{T+3}, v0, 4, 1")
    i(f"v_lshlrev_b32 v{T+3}, 4, v{T+3}")
    i("s_lshl_b32 s42, s3, 9")
    i(f"s_addk_i32 s42, {LDS_SLOT}")
    i(f"v_add_u32 v{T+3}, s42, v{T+3}")
    i(f"v_mul_u32_u24 v{T+5}, 43, v{T}")
    i(f"v_lshrrev_b32 v{T+5}, 8, v{T+5}")
    i(f"v_mul_u32_u24 v{T+6}, 6, v{T+5}")
    i(f"v_sub_u32 v{T+6}, v{T}, v{T+6}")
    i(f"v_lshl_add_u32 v{V_WRA}, v{T+5}, 8, v{T+3}")
    i(f"v_lshl_add_u32 v{V_WRA}, v{T+6}, 5, v{V_WRA}")
    i(f"v_lshlrev_b32 v{T+6}, 5, v{T}")
    i(f"v_add_u32 v{V_SCA}, {LDS_SCALE}, v{T+6}", "scale address: n*32")
    i(f"v_lshlrev_b32 v{V_L4}, 2, v{V_LANE}")
    i(f"v_lshlrev_b32 v{V_POLL}, 4, v{V_LANE}")
    i(f"v_lshrrev_b32 v{T+4}, 2, v{V_LANE}")
    i(f"v_and_b32 v{T+5}, 3, v{V_LANE}")
    i(f"v_mul_u32_u24 v{V_RDA}, 3, v{T+4}")
    i(f"v_add_lshl_u32 v{V_RDA}, v{V_RDA}, v{T+5}, 2", "slot read address: (3*(l>>2) + (l&3))*4")
    i(f"v_lshrrev_b32 v{T+6}, 4, v{V_LANE}", "line")
    i(f"v_lshlrev_b32 v{V_TRA}, 6, v{T+6}")
    i(f"v_lshl_add_u32 v{V_TRA}, v{T+5}, 4, v{V_TRA}", "transpose address: line*64 + granule*16")
    i(f"v_bfe_u32 v{T+7}, v{V_LANE}, 2, 1")
    i(f"v_lshl_add_u32 v{V_PUB}, v{T+7}, {SUBS.bit_length() - 1}, v{V_TRA}")
    i(f"v_bfe_u32 v{T+7}, v{V_LANE}, 3, 1")
    i(f"v_lshl_add_u32 v{V_PUB}, v{T+7}, 13, v{V_PUB}", "publish address: + copy")
    i(f"v_lshlrev_b32 v{T+6}, 8, v{T+6}")
    i(f"v_lshl_add_u32 v{V_ATOM}, v{T}, 2, v{T+6}", "atomic address: line*256 + (l&15)*4")
    i("s_cmp_eq_u32 s3, 0")
    i("s_cbranch_scc1 L_now" if o.latew and D < L else "s_cbranch_scc1 L_ctl")
    if o.pads & 2:
        a.c("waves 1-3 touch the store code while their loads fly")
        i("s_cmp_gt_u32 s3, 3")
        i("s_cbranch_scc1 L_now")
        i("s_mov_b64 exec, 0")
        i("s_cmp_eq_u32 s3, 2")
        i("s_cbranch_scc1 L_padD")
        i("s_cmp_eq_u32 s3, 3")
        i("s_cbranch_scc1 L_padE")
        i("s_branch L_padC")
        a("L_back2:")
        i("s_mov_b64 exec, -1")
    i("s_branch L_now")
    a("L_exit:")
    i("s_endpgm")
    def ctl_block():
        a.c("wave 0: weights, flag and hand-off addresses (the extra loads only make its counted waits stricter)")
        i("s_load_dwordx2 s[32:33], s[0:1], 8", "w_down")
        i("s_load_dwordx2 s[36:37], s[0:1], 16", "w_up")
        i("s_movk_i32 s34, 1152")
        i("s_mov_b32 s35, 0x00020000")
        i("s_movk_i32 s38, 1152")
        i("s_mov_b32 s39, 0x00020000")
        for r in range(21):
            i(f"v_mov_b32 v{V_WD+r}, 0")
        i(f"v_and_b32 v{T+1}, 31, v0")
        i(f"v_lshrrev_b32 v{T+4}, 5, v0")
        i(f"v_mul_u32_u24 v{V_WA}, 36, v{T+1}")
        i(f"v_mad_u32_u24 v{V_WA}, v{T+4}, 6, v{V_WA}")
        i(f"v_lshlrev_b32 v{V_WA+1}, 1, v0")
        i("s_waitcnt lgkmcnt(0)")
        pad("L_padA", "L_back1") if o.pads & 1 else None
        def weights():
            for ii in range(3):
                for jj in range(3):
                    i(f"buffer_load_short_d16_hi v{V_WD+3*ii+jj}, v{V_WA}, s[32:35], 0 offen offset:{12*ii+2*jj}")
            for j in range(6):
                for h in range(2):
                    i(f"buffer_load_short_d16_hi v{V_WU+2*j+h}, v{V_WA+1}, s[36:39], 0 offen offset:{192*j+128*h}")

        weights()
        if D == L:
            i("s_mov_b64 exec, 1")
            i(f"buffer_load_dword v{V_FLAG}, off, s[28:31], 0 sc1", "zeroing-done flag")
            i("s_mov_b64 exec, -1")
        i("s_mov_b32 s46, 0x88888888")
        i("s_mov_b32 s47, s46")
        i(f"s_mov_b32 s51, {f2u(float(NWG // R)):#x}", "WGs per replica, as float")
        i("s_mov_b32 s50, 0x100000", "spin budget")

    late = o.latew and D < L
    if not late:
        a("L_ctl:")
        ctl_block()
    a("L_now:")
    if o.otouch:
        a.c("wave 3 touches the pages of out this WG will write (address translation warm-up; the value is unused)")
        i(f"s_cmp_lg_u32 s3, {o.otouch}")
        i("s_cbranch_scc1 L_now2")
        i(f"v_mul_lo_u32 v{T}, v{V_LANE}, s55")
        i("s_waitcnt lgkmcnt(0)")
        i("s_mov_b32 exec_hi, 0")
        i(f"buffer_load_dword v{T+1}, v{T}, s[20:23], s41 offen nt")
        i("s_mov_b32 exec_hi, -1")
        a("L_now2:")
    if D < L:
        i("s_mov_b64 exec, s[44:45]")
        for k in range(D, L):
            i(f"s_waitcnt vmcnt({D - 1})")
            load(k)
            mfma(k - D)
            if k == o.kflag:
                i("s_cmp_lg_u32 s3, 0")
                i("s_cbranch_scc1 L_nofl")
                if late:
                    i("s_mov_b64 exec, -1")
                    ctl_block()
                i("s_mov_b64 exec, 1")
                i(f"buffer_load_dword v{V_FLAG}, off, s[28:31], 0 sc1", "zeroing-done flag")
                i("s_mov_b64 exec, s[44:45]")
                a("L_nofl:")
        i("s_mov_b64 exec, -1")
        stamp(2)
    for k in range(L - D, L):
        i(f"s_waitcnt vmcnt({L - 1 - k})")
        mfma(k)
    stamp(3)
    if o.prio == 2:
        i("s_setprio 0")
    if o.stamps:
        if not o.cyc:
            i("s_mov_b32 s68, 0")
        if o.x9 == "atom":
            i("s_mov_b32 s78, 0")
    i("s_mov_b32 exec_lo, 0x0fff0fff")
    i("s_mov_b32 exec_hi, 0")
    i("s_cmp_lg_u32 s3, 0")
    i("s_nop 4" if o.prio != 2 else "s_nop 3")
    i(f"ds_write_b128 v{V_WRA}, v[{V_D}:{V_D+3}]")
    i("s_mov_b64 exec, -1")
    i("s_cbranch_scc0 L_ctl2")
    i("s_waitcnt lgkmcnt(0)")
    i("s_barrier")
    i("s_branch L_wait2")
    a("L_flagspin:")
    a.c("the zeroing-done flag was not up yet when this wave read it")
    i(f"buffer_load_dword v{V_FLAG}, off, s[28:31], 0 sc1")
    i("s_sub_u32 s50, s50, 1")
    i("s_cbranch_scc1 L_flagok")
    i("s_waitcnt vmcnt(0)")
    a("L_ctl2:")
    i(f"v_readfirstlane_b32 s43, v{V_FLAG}")
    i(f"s_cmpk_lt_u32 s43, {NZ << 8:#x}")
    i("s_cbranch_scc1 L_flagspin")
    a("L_flagok:")
    pad("L_padB", "L_back1") if o.pads & 1 else None
    a.c("replica = 2*q + bit 3 of the id; q depends on the id and the flag word only, so all replicas hold the same number of WGs")
    if near:
        i("s_getreg_b32 s54, hwreg(HW_REG_XCC_ID, 0, 3)")
        i("s_lshr_b32 s42, s43, 1", "XCC of WG 0")
        i("s_add_u32 s42, s42, s2")
        i("s_lshr_b32 s43, s43, 2")
        i("s_xor_b32 s42, s42, s43", "bit 2: side the id is expected on ^ side of region 0")
        i("s_xor_b32 s52, s54, s43")
        i("s_bfe_u32 s42, s42, 0x10002")
        i("s_bfe_u32 s52, s52, 0x10002")
        i("s_and_b32 s53, s54, 1" if not o.g2 else "s_mov_b32 s53, 0")
        if o.g2:
            i("s_mov_b32 s6, 0x0f0f0f0f")
            i("s_mov_b32 s7, s6")
    else:
        i("s_bfe_u32 s42, s2, 0x10002")
        i("s_bfe_u32 s52, s2, 0x10001")
        i("s_and_b32 s53, s2, 1")
    i(f"s_bfe_u32 s43, s2, {0x10003 if R == 4 else 0x20003:#x}")
    i("s_lshl2_add_u32 s48, s42, s43")
    i("s_lshl_b32 s48, s48, 11", "accumulators: q*8192 + sub*2048")
    i(f"s_add_u32 s49, s48, {4*LS}")
    i(f"s_lshl{1 if R == 4 else 2}_add_u32 s56, s42, s43")
    i("s_lshl_b32 s56, s56, 9")
    i(f"s_addk_i32 s56, {PUB0}", "published line: base + replica*512 (+ copy)")
    i("s_add_u32 s57, s56, 256")
    i(f"s_lshl{2 if R == 4 else 1}_add_u32 s52, s52, s53")
    i(f"s_lshl_b32 s52, s52, {SUBS.bit_length() - 1}")
    i(f"s_addk_i32 s52, {PUB0}", "polled copy: base + q*8192 + sub*stride")
    i("s_mov_b32 s43, 0x36800000", "2^-18 (1/pixels) folded into w_down")
    for r in range(9):
        i(f"v_mul_f32 v{V_WD+r}, s43, v{V_WD+r}")
    i("s_mov_b32 s42, 0xbfb8aa3b", "-log2(e)")
    i("s_waitcnt lgkmcnt(0)")
    i("s_barrier")
    cyc(0)
    for k in range(W):
        i(f"ds_read2st64_b32 v[{Q+2*k}:{Q+2*k+1}], v{V_RDA} offset0:{LDS_SLOT//256+2*k} offset1:{LDS_SLOT//256+2*k+1}")
    S0, S1 = T, T + 1
    step = 1
    while step < W:
        for k in range(0, W, 2 * step):
            if step == 1:
                i(f"s_waitcnt lgkmcnt({W-2-k if not o.cyc else 0})")
            dst = T + 2 if step * 2 >= W else Q + 2 * k
            i(f"v_pk_add_f32 v[{dst}:{dst+1}], v[{Q+2*k}:{Q+2*k+1}], v[{Q+2*(k+step)}:{Q+2*(k+step)+1}]")
        step *= 2
    i(f"v_cndmask_b32 v{S0}, v{T+2}, 1.0, s[46:47]")
    i(f"v_cndmask_b32 v{S1}, v{T+3}, 1.0, s[46:47]")
    i(f"buffer_atomic_add_f32 v{S0}, v{V_ATOM}, s[24:27], s48 offen sc0")
    i(f"buffer_atomic_add_f32 v{S1}, v{V_ATOM}, s[24:27], s49 offen sc0")
    stamp(4)
    cyc(1)
    i(f"v_cndmask_b32 v{T+2}, v{T+2}, 1.0, s[46:47]")
    i(f"v_cndmask_b32 v{T+3}, v{T+3}, 1.0, s[46:47]")
    i("s_waitcnt vmcnt(1)")
    i(f"v_add_f32 v{T+2}, v{T+2}, v{S0}")
    i("s_waitcnt vmcnt(0)")
    i(f"v_add_f32 v{T+3}, v{T+3}, v{S1}")
    x9("atom")
    cyc(2)
    a.c("transpose through LDS: lane (line, copy, granule) gets one whole 16-byte granule")
    i(f"ds_write2st64_b32 v{V_L4}, v{T+2}, v{T+3} offset0:0 offset1:1")
    i(f"ds_read_b128 v[{P}:{P+3}], v{V_TRA}")
    i(f"ds_read_b128 v[{P+4}:{P+7}], v{V_TRA} offset:256")
    i("s_waitcnt lgkmcnt(1)" if not o.stamps else "s_waitcnt lgkmcnt(0)")
    i(f"v_cmp_eq_f32 vcc, s51, v{P+3}")
    i("s_and_b64 exec, vcc, vcc" if not o.g2 else "s_and_b64 exec, vcc, s[6:7]")
    i("s_cbranch_scc0 L_nopubA")
    i(f"buffer_store_dwordx4 v[{P}:{P+3}], v{V_PUB}, s[24:27], s56 offen sc1")
    a("L_nopubA:")
    i("s_mov_b64 exec, -1")
    i("s_waitcnt lgkmcnt(0)")
    i(f"v_cmp_eq_f32 vcc, s51, v{P+7}")
    i("s_and_b64 exec, vcc, vcc" if not o.g2 else "s_and_b64 exec, vcc, s[6:7]")
    i("s_cbranch_scc0 L_nopubB")
    i(f"buffer_store_dwordx4 v[{P+4}:{P+7}], v{V_PUB}, s[24:27], s57 offen sc1")
    a("L_nopubB:")
    i("s_mov_b64 exec, -1")
    cyc(3)
    a.c("poll the published replica sums")
    a("L_poll:")
    if o.pollsleep:
        i(f"s_sleep {o.pollsleep}")
    NP = R // 2
    for k in range(NP):
        off = f" offset:{1024*k}" if k else ""
        i(f"buffer_load_dwordx4 v[{Q+4*k}:{Q+4*k+3}], v{V_POLL}, s[24:27], s52 offen{off} sc1")
    i("s_sub_u32 s50, s50, 1")
    i("s_cbranch_scc1 L_done")
    for k in range(NP):
        i(f"s_waitcnt vmcnt({NP-1-k})")
        if k == 0:
            i(f"v_cmp_eq_f32 vcc, s51, v{Q+3}")
        else:
            i(f"v_cmp_eq_f32 s[4:5], s51, v{Q+4*k+3}")
            i("s_and_b64 vcc, vcc, s[4:5]")
    i("s_cmp_eq_u64 vcc, -1")
    i("s_cbranch_scc0 L_poll")
    a("L_done:")
    stamp(5)
    cyc(4)
    if R == 8:
        i(f"v_pk_add_f32 v[{Q}:{Q+1}], v[{Q}:{Q+1}], v[{Q+8}:{Q+9}]")
        i(f"v_pk_add_f32 v[{Q+4}:{Q+5}], v[{Q+4}:{Q+5}], v[{Q+12}:{Q+13}]")
        i(f"v_add_f32 v{Q+2}, v{Q+2}, v{Q+10}")
        i(f"v_add_f32 v{Q+6}, v{Q+6}, v{Q+14}")
    i(f"v_pk_add_f32 v[{P}:{P+1}], v[{Q}:{Q+1}], v[{Q+4}:{Q+5}]")
    i(f"v_pk_add_f32 v[{P+4}:{P+5}], v[{Q}:{Q+1}], v[{Q+4}:{Q+5}]")
    i(f"v_add_f32 v{P+2}, v{Q+2}, v{Q+6}")
    i(f"v_add_f32 v{P+6}, v{Q+2}, v{Q+6}")
    i(f"v_permlane32_swap_b32 v{P+4}, v{P}")
    i(f"v_permlane32_swap_b32 v{P+5}, v{P+1}")
    i(f"v_permlane32_swap_b32 v{P+6}, v{P+2}")
    i(f"v_pk_add_f32 v[{P}:{P+1}], v[{P}:{P+1}], v[{P+4}:{P+5}]")
    i(f"v_add_f32 v{P+2}, v{P+2}, v{P+6}")
    for r in range(3):
        i(f"v_cvt_pk_bf16_f32 v{P+r}, 0, v{P+r}", "sum rounded to bf16, left in the high half" if r == 0 else None)
    H = P + 4
    for jj in range(3):
        i(f"v_mul_f32 v{H+jj}, v{P}, v{V_WD+jj}")
    for ii in (1, 2):
        for jj in range(3):
            i(f"v_fmac_f32 v{H+jj}, v{P+ii}, v{V_WD+3*ii+jj}")
    for dpp in ("quad_perm:[1,0,3,2]", "quad_perm:[2,3,0,1]", "row_half_mirror", "row_mirror"):
        for jj in range(3):
            i(f"v_add_f32_dpp v{H+jj}, v{H+jj}, v{H+jj} {dpp} row_mask:0xf bank_mask:0xf")
    for jj in range(3):
        i(f"v_add_f32_dpp v{P}, v{H+jj}, v{H+jj} row_bcast:15 row_mask:0xa bank_mask:{1 << jj:#x}",
          "h[j] -> lane 16 + 4*(j%3) + 32*(j/3)" if jj == 0 else None)
    i(f"v_cvt_pk_bf16_f32 v{H}, 0, v{P}", "h (bf16)")
    i(f"v_mul_f32 v{P}, s42, v{H}")
    i(f"v_exp_f32 v{P}, v{P}")
    i("s_nop 0")
    i(f"v_add_f32 v{P}, 1.0, v{P}")
    i(f"v_rcp_f32 v{P}, v{P}")
    i("s_nop 0")
    i(f"v_mul_f32 v{H}, v{H}, v{P}")
    i(f"v_cvt_pk_bf16_f32 v{H}, 0, v{H}", "silu(h) (bf16)")
    i("s_nop 0")
    for j in range(6):
        i(f"v_readlane_b32 s{8+j}, v{H}, {16 + 4*(j % 3) + 32*(j//3)}")
    Z = P
    sel = lambda j: "op_sel:[0,1,0] op_sel_hi:[1,1,1]" if j & 1 else "op_sel:[0,0,0] op_sel_hi:[1,0,1]"
    i(f"v_pk_mul_f32 v[{Z}:{Z+1}], v[{V_WU}:{V_WU+1}], s[8:9] op_sel:[0,0] op_sel_hi:[1,0]")
    for j in range(1, 6):
        sp = 8 + (j & ~1)
        i(f"v_pk_fma_f32 v[{Z}:{Z+1}], v[{V_WU+2*j}:{V_WU+2*j+1}], s[{sp}:{sp+1}], v[{Z}:{Z+1}] {sel(j)}")
    i(f"v_cvt_pk_bf16_f32 v{Z}, 0, v{Z}", "z (bf16)")
    i(f"v_cvt_pk_bf16_f32 v{Z+1}, 0, v{Z+1}")
    i(f"v_pk_mul_f32 v[{Z}:{Z+1}], v[{Z}:{Z+1}], s[42:43] op_sel:[0,0] op_sel_hi:[1,0]")
    i(f"v_exp_f32 v{Z}, v{Z}")
    i(f"v_exp_f32 v{Z+1}, v{Z+1}")
    i("s_nop 0")
    i(f"v_pk_add_f32 v[{Z}:{Z+1}], v[{Z}:{Z+1}], 1.0 op_sel_hi:[1,0]")
    i(f"v_rcp_f32 v{Z}, v{Z}")
    i(f"v_rcp_f32 v{Z+1}, v{Z+1}")
    i(f"v_cvt_pk_bf16_f32 v{Z}, 0, v{Z}", "sigmoid (bf16)")
    i(f"v_cvt_pk_bf16_f32 v{Z+1}, 0, v{Z+1}")
    i(f"ds_write2st64_b32 v{V_L4}, v{Z}, v{Z+1} offset0:{LDS_SCALE//256} offset1:{LDS_SCALE//256+1}")
    cyc(5)
    i("s_waitcnt lgkmcnt(0)")
    i("s_barrier")
    cyc(6)
    if o.reset:
        i("s_cmp_lg_u32 s2, 0")
        i("s_cbranch_scc1 L_go")
        a.c("every WG has read the flag by now: leave d_debug as it was found")
        i(f"v_mov_b32 v{T}, 0")
        i("s_mov_b64 exec, 1")
        i(f"buffer_store_dword v{T}, off, s[28:31], 0 sc1")
        i("s_mov_b64 exec, -1")
    i("s_branch L_go")
    if not o.znear:
        zero_block()
    if o.split:
        a(".p2align 12")
    a("L_wait2:")
    pad("L_padC", "L_padF") if o.pads & 2 else None
    pad("L_padC", "L_back1") if o.pads & 4 else None
    i("s_barrier")
    a("L_go:")
    i(f"ds_read_b128 v[{V_SC}:{V_SC+3}], v{V_SCA}")
    i(f"ds_read_b128 v[{V_SC+4}:{V_SC+7}], v{V_SCA} offset:16")
    i("s_mov_b64 exec, s[44:45]")
    i("s_mov_b32 s40, s41")
    stamp(6)
    i("s_mov_b32 s43, 0xffff0000")
    if o.patO:
        if o.patby == "xcc":
            i("s_getreg_b32 vcc_lo, hwreg(HW_REG_XCC_ID, 0, 1)")
        else:
            i("s_lshr_b32 vcc_lo, s3, 2")
        i("s_mov_b32 vcc_hi, 0")
    for k in range(L):
        d = V_DATA + 4 * k
        for r in range(4):
            i(f"v_lshlrev_b32 v{T+2*r}, 16, v{d+r}")
            i(f"v_and_b32 v{T+2*r+1}, s43, v{d+r}")
        if k == 0:
            i("s_waitcnt lgkmcnt(0)")
        for r in range(4):
            i(f"v_pk_mul_f32 v[{T+2*r}:{T+2*r+1}], v[{T+2*r}:{T+2*r+1}], v[{V_SC+2*r}:{V_SC+2*r+1}]")
        for r in range(4):
            i(f"v_cvt_pk_bf16_f32 v{d+r}, v{T+2*r}, v{T+2*r+1}")
        if o.sdepth and k >= o.sdepth:
            i(f"s_waitcnt vmcnt({o.sdepth - 1})")
        if o.pat:
            fl = {"s": "sc1", "n": "nt", "p": "", "w": "nt sc1", "0": "sc0", "z": "sc0 sc1"}[o.pat[k * len(o.pat) // L] if not o.patrep else o.pat[k % len(o.pat)]]
        else:
            fl = stf2 if k < o.nst2 or k >= L - o.nst2e else stf
        FL = {"s": "sc1", "n": "nt", "p": "", "w": "nt sc1"}
        if o.patO and o.patO[k * len(o.patO) // L] != o.pat[k * len(o.pat) // L]:
            i(f"s_cbranch_vccnz L_alt{k}")
            i(f"buffer_store_dwordx4 v[{d}:{d+3}], v{V_OFF}, s[20:23], s40 offen {fl}".rstrip())
            i(f"s_branch L_nx{k}")
            a(f"L_alt{k}:")
            i(f"buffer_store_dwordx4 v[{d}:{d+3}], v{V_OFF}, s[20:23], s40 offen {FL[o.patO[k * len(o.patO) // L]]}".rstrip())
            a(f"L_nx{k}:")
            if k != L - 1:
                i("s_add_u32 s40, s40, s55")
        else:
            mem("buffer_store_dwordx4", k, f"v[{d}:{d+3}]", "s[20:23]", fl)
        if k == 0:
            cyc(7)
        if o.x9 == f"st{k}":
            i("s_waitcnt vmcnt(0)")
            i("s_memrealtime s[78:79]")
        if o.pads & 6 and k in (8, 17, 26):
            pad({8: "L_padD", 17: "L_padE", 26: "L_padF"}[k], "L_back2" if o.pads & 2 else "L_back1")
        if o.wb and k == o.wbk:
            i(f"s_cmp_ge_u32 s2, {o.wb}")
            i("s_cbranch_scc1 L_nowb")
            i(f"s_cmp_lg_u32 s3, {o.wbwave}")
            i("s_cbranch_scc1 L_nowb")
            if o.wbwait:
                i("s_waitcnt vmcnt(0)")
            i("buffer_wbl2 sc1")
            a("L_nowb:")
        if o.sbar and k % o.sbar == o.sbar - 1 and k != L - 1:
            i("s_barrier")
    if o.stamps:
        stamp(7)
        i("s_waitcnt vmcnt(0)")
        stamp(8)
        i("s_memtime s[90:91]")
        i("s_mov_b64 exec, -1")
        i("s_getreg_b32 s42, hwreg(HW_REG_HW_ID)")
        i("s_getreg_b32 s43, hwreg(HW_REG_XCC_ID)")
        i("s_waitcnt lgkmcnt(0)")
        i(f"v_mov_b32 v{V_ZA}, 0")
        for k in range(nstamp[0] if not o.cyc else 9):
            i(f"v_writelane_b32 v{V_ZA}, s{60+2*k}, {k}")
        i(f"v_writelane_b32 v{V_ZA}, s78, 9")
        i(f"v_writelane_b32 v{V_ZA}, s92, 10")
        i(f"v_writelane_b32 v{V_ZA}, s94, 13")
        i("s_sub_u32 s90, s90, s88")
        i(f"v_writelane_b32 v{V_ZA}, s90, 11")
        i("s_sub_u32 s50, 0x100000, s50")
        i(f"v_writelane_b32 v{V_ZA}, s50, 12")
        i(f"v_writelane_b32 v{V_ZA}, s42, 14")
        i(f"v_writelane_b32 v{V_ZA}, s43, 15")
        i("s_lshl_b32 s42, s2, 4")
        i("s_add_u32 s42, s42, s3")
        i("s_lshl_b32 s42, s42, 6")
        i("s_add_u32 s42, s42, 0x4000000")
        i("s_mov_b64 exec, 0xffff")
        i(f"buffer_store_dword v{V_ZA}, v{V_L4}, s[24:27], s42 offen")
        if o.probe:
            pa, pb, pk, pw = [int(x) for x in o.probe.split(",")]
            i(f"s_cmp_lg_u32 s3, {o.probewave}")
            i("s_cbranch_scc1 L_end")
            i(f"s_cmp_lg_u32 s2, {pw}")
            i("s_cbranch_scc1 L_end")
            i(f"s_sub_u32 s42, s{60+2*pb}, s{60+2*pa}")
            i(f"s_mul_i32 s42, s42, {pk}")
            i("s_add_u32 s42, s42, 4000")
            i("s_min_u32 s42, s42, 20000")
            a("L_probe:")
            i("s_memrealtime s[50:51]")
            i("s_waitcnt lgkmcnt(0)")
            i("s_sub_u32 s43, s50, s60")
            i("s_cmp_lt_u32 s43, s42")
            i("s_cbranch_scc1 L_probe")
    a("L_end:")
    i("s_endpgm")
    a(f""".section .rodata,"a"
.p2align 6
.amdhsa_kernel {KNAME}
  .amdhsa_next_free_vgpr {NV}
  .amdhsa_next_free_sgpr {96 if o.stamps else (80 if o.race else 64)}
  .amdhsa_accum_offset {(NV + 3) // 4 * 4}
  .amdhsa_group_segment_fixed_size 0
  .amdhsa_kernarg_size 48
  .amdhsa_user_sgpr_count 2
  .amdhsa_user_sgpr_kernarg_segment_ptr 1
  .amdhsa_system_sgpr_workgroup_id_x 1
  .amdhsa_float_denorm_mode_32 3
.end_amdhsa_kernel""")
    return a.text()


def main():
    ap = argparse.ArgumentParser()
    ap.add_argument("-o", default="-")
    ap.add_argument("--xcdswz", type=int, default=0)
    ap.add_argument("--otouch", type=int, default=0)
    ap.add_argument("--sdepth", type=int, default=0)
    ap.add_argument("--reset", type=int, default=1)
    ap.add_argument("--pat", default="s" * 17 + "n" * 15)
    ap.add_argument("--patrep", type=int, default=0)
    ap.add_argument("--patO", default="")
    ap.add_argument("--patby", default="xcc")
    ap.add_argument("--lpat", default="")
    ap.add_argument("--ldepth", type=int, default=12)
    ap.add_argument("--run", type=int, default=4)
    ap.add_argument("--runw", type=int, default=0)
    ap.add_argument("--rot", type=lambda x: int(x, 0), default=0)
    ap.add_argument("--pollsleep", type=int, default=0)
    ap.add_argument("--half", type=int, default=0)
    ap.add_argument("--kflag", type=int, default=31)
    ap.add_argument("--early", type=int, default=0)
    ap.add_argument("--znear", type=int, default=1)
    ap.add_argument("--cyc", type=int, default=0)
    ap.add_argument("--own", type=int, default=1)
    ap.add_argument("--npr", type=int, default=8)
    ap.add_argument("--nth", type=int, default=8)
    ap.add_argument("--pstr", type=int, default=512)
    ap.add_argument("--ack", type=int, default=0)
    ap.add_argument("--ackall", type=int, default=0)
    ap.add_argument("--wb", type=int, default=0)
    ap.add_argument("--wbk", type=int, default=31)
    ap.add_argument("--wbwave", type=int, default=7)
    ap.add_argument("--wbwait", type=int, default=1)
    ap.add_argument("--latew", type=int, default=0)
    ap.add_argument("--duty", type=int, default=3)
    ap.add_argument("--prio", type=int, default=2)
    ap.add_argument("--pbase", type=int, default=16384)
    ap.add_argument("--warm2", type=int, default=0)
    ap.add_argument("--R", type=int, default=4)
    ap.add_argument("--g2", type=int, default=0)
    ap.add_argument("--race", type=int, default=0)
    ap.add_argument("--racew", type=int, default=7)
    ap.add_argument("--gap", type=int, default=4)
    ap.add_argument("--abba", type=int, default=0)
    ap.add_argument("--near", type=int, default=1)
    ap.add_argument("--pads", type=int, default=4)
    ap.add_argument("--split", type=int, default=1)
    ap.add_argument("--wgrp", type=int, default=1)
    ap.add_argument("--sbar", type=int, default=0)
    ap.add_argument("--ldflags", default="nt")
    ap.add_argument("--stflags", default="nt")
    ap.add_argument("--stflags2", default="nt+sc1")
    ap.add_argument("--nst2", type=int, default=16)
    ap.add_argument("--nst2e", type=int, default=0)
    ap.add_argument("--stamps", type=int, default=0)
    ap.add_argument("--probe", default="")
    ap.add_argument("--probewave", type=int, default=0)
    ap.add_argument("--x9", default="")
    o = ap.parse_args()
    t = gen(o)
    if o.o == "-":
        sys.stdout.write(t)
    else:
        open(o.o, "w").write(t)


if __name__ == "__main__":
    main()
```

```python
import argparse
import struct
import sys

XBYTES = 512 * 512 * 96 * 2
NWG = 256
KNAME = "standalone__se_block__vision_kernel"

HEADER = """; Kernarg layout for this problem (48 bytes, ptrs only, base s[0:1]):
;   offset   0: d_in[0] x  shape=(1, 512, 512, 96) dtype=bfloat16 strides=(50331648, 98304, 192, 2) contiguous=True
;   offset   8: d_in[1] w_down  shape=(96, 6) dtype=bfloat16 strides=(12, 2) contiguous=True
;   offset  16: d_in[2] w_up  shape=(6, 96) dtype=bfloat16 strides=(192, 2) contiguous=True
;
;  2. wave 0 adds the WG sums to one of 4 replicas in d_ws with returning float atomics on
;     16-byte granules {3 sums, count}; the WG that sees the final count publishes the granule
;  4. all waves scale their registers and store
; WGs 0-15 zero the hand-off area first and count that in a flag word in d_debug.
"""


def f2u(x):
    return struct.unpack("<I", struct.pack("<f", x))[0]


class Asm:
    def __init__(self):
        self.l = []

    def __call__(self, s):
        for line in s.strip("\n").split("\n"):
            self.l.append(line)

    def i(self, s, c=None):
        self.l.append("    " + s + (f"    ; {c}" if c else ""))

    def c(self, s):
        self.l.append("    ; " + s)

    def text(self):
        return "\n".join(self.l) + "\n"


def gen(o):
    W, L, UNIT, R, LS = 8, 32, 768, o.R, 256
    NZ = 4 * R
    PUB0 = 4096 if R == 4 else 16384
    SUBS = R * 512
    near = o.near
    a = Asm()
    i = a.i
    LDS_TR, LDS_SCALE, LDS_SLOT = 0, 512, 1024
    lds = LDS_SLOT + W * 512
    a(HEADER)
    a(f"; @launch grid=({NWG},1,1) block=({W*64},1,1) lds={lds}")
    a(f""".amdgcn_target "amdgcn-amd-amdhsa--gfx950"
.text
.globl {KNAME}
.p2align 12
.p2align 8
.type {KNAME},@function
{KNAME}:""")

    V_OFF, V_A, V_D, V_LANE, V_POLL, V_ATOM, V_FLAG, V_L4, V_SCA = 1, 2, 6, 10, 11, 12, 13, 14, 15
    V_WRA, V_RDA, V_TRA, V_PUB, V_T, V_ZA, V_WD, V_WU, V_SC, V_Q, V_DATA = 16, 17, 18, 19, 20, 30, 31, 40, 52, 60, 76
    V_WA = 28
    NV = V_DATA + 4 * L
    dreg = lambda k: f"v[{V_DATA+4*k}:{V_DATA+4*k+3}]"
    T, P, Q = V_T, V_SC, V_Q

    nstamp = [0]

    def stamp(k):
        if o.stamps and not (o.cyc and k >= 2):
            nstamp[0] = max(nstamp[0], k + 1)
            i(f"s_memrealtime s[{60+2*k}:{61+2*k}]")

    def cyc(k):
        if o.cyc:
            i(f"s_memtime s[{64+2*k}:{65+2*k}]")

    def x9(tag):
        if o.x9 == tag:
            i("s_memrealtime s[78:79]")

    ldf = o.ldflags.replace("+", " ")
    stf = o.stflags.replace("+", " ")
    stf2 = o.stflags2.replace("+", " ")
    u_stride = NWG * W * UNIT

    run = o.run
    u_stride *= run

    def mem(op, k, reg, srd, flags):
        j = k % run
        off = f" offset:{j * (UNIT if o.runw else 0)}" if j and o.runw else ""
        i(f"{op} {reg}, v{V_OFF}, {srd}, s40 offen{off} {flags}".rstrip())
        if k != L - 1:
            if run > 1 and not o.runw:
                i(f"s_add_u32 s40, s40, {'s58' if j != run - 1 else 's55'}")
            elif j == run - 1:
                i("s_add_u32 s40, s40, s55")
            if o.rot:
                i("s_cmp_ge_u32 s40, s18")
                i("s_cselect_b32 s58, s18, 0")
                i("s_sub_u32 s40, s40, s58")

    def pad(name, target):
        if o.pads:
            a(f"{name}:")
            i(f"s_cbranch_execz {target}", "landing pad of the instruction-cache warm-up hops (EXEC = 0 only there)")

    def zero_block():
        a("L_zero:")
        a.c(f"wave {o.duty} of WGs 0-{NZ-1} zeroes 1 KiB each of the {NZ} KiB hand-off area")
        if o.prio:
            i("s_setprio 3", "ahead of the older waves' loads")
        i("s_mov_b32 s26, 0x10000000")
        i("s_mov_b32 s27, 0x00020000")
        i("s_mov_b64 s[44:45], exec")
        i("s_mov_b64 exec, -1")
        i(f"v_and_b32 v{V_LANE}, 63, v0")
        i(f"v_lshlrev_b32 v{V_POLL}, 4, v{V_LANE}")
        for r in range(4):
            i(f"v_mov_b32 v{P+r}, 0")
        i("s_lshl_b32 s43, s2, 10")
        i(f"buffer_store_dwordx4 v[{P}:{P+3}], v{V_POLL}, s[24:27], s43 offen sc1")
        if near:
            i("s_cmp_lg_u32 s2, 0")
            i("s_cbranch_scc1 L_zero2")
            a.c("WG 0 also writes the 16 spare lines it times below")
            i(f"v_lshrrev_b32 v{T}, 3, v{V_LANE}")
            i(f"v_lshlrev_b32 v{T}, 12, v{T}")
            i(f"v_lshl_add_u32 v{T}, v{V_LANE}, 9, v{T}")
            i("s_mov_b64 exec, 0xffff")
            i(f"s_mov_b32 s43, {NZ * 1024}")
            i(f"buffer_store_dwordx4 v[{P}:{P+3}], v{T}, s[24:27], s43 offen sc1")
            a("L_zero2:")
        if o.early:
            i("s_mov_b64 exec, s[44:45]")
            i("s_branch L_loads")
            a("L_flag:")
            i("s_mov_b64 s[44:45], exec")
        else:
            i("s_mov_b64 exec, -1")
        i("s_load_dwordx2 s[28:29], s[0:1], 32", "debug")
        i("s_movk_i32 s30, 256")
        i("s_mov_b32 s31, 0x00020000")
        i("s_movk_i32 s4, 0x100")
        i("s_waitcnt vmcnt(0) lgkmcnt(0)", "zero store acknowledged")
        if near:
            i("s_cmp_lg_u32 s2, 0")
            i("s_cbranch_scc1 L_flag2")
            a.c("Addresses that differ in bit 13 lie behind different I/O dies.  Read just-written spare lines of both")
            a.c("halves with uncached scalar loads, in both orders: the closer half issued first leaves a gap before the")
            a.c("other one arrives.  This only picks where the hand-off lines of a WG live (speed): s4/s5 end up as one")
            a.c("bit of the flag word, and either value of that bit gives a valid partition of the WGs.")
            i(f"s_load_dword s14, s[24:25], {NZ * 1024} glc", "address translation")
            if o.warm2:
                i(f"s_load_dword s15, s[24:25], {NZ * 1024 + 8192} glc")
            i("s_waitcnt lgkmcnt(0)")
            if o.gap:
                n = o.gap
                for rnd, hs in enumerate(((0, 1), (1, 0))):
                    for h in hs:
                        for jj in range(n):
                            line = (jj + rnd * n) % 8
                            i(f"s_load_dword s{12 + (jj & 3)}, s[24:25], {NZ * 1024 + 8192*h + 512 * line} glc")
                    i(f"s_waitcnt lgkmcnt({n})")
                    i("s_memtime s[8:9]")
                    i("s_waitcnt lgkmcnt(0)")
                    i("s_memtime s[10:11]")
                    i("s_waitcnt lgkmcnt(0)")
                    i(f"s_sub_u32 s{5 - rnd}, s10, s8")
            elif o.abba:
                n = o.abba
                for rnd, h in enumerate((0, 1, 1, 0)):
                    i("s_memtime s[8:9]")
                    i("s_waitcnt lgkmcnt(0)")
                    for jj in range(n):
                        i(f"s_load_dword s{12 + (jj & 3)}, s[24:25], {NZ * 1024 + 8192*h + 512 * (jj + n * (rnd >> 1))} glc")
                    i("s_waitcnt lgkmcnt(0)")
                    i("s_memtime s[10:11]")
                    i("s_waitcnt lgkmcnt(0)")
                    if rnd < 2:
                        i(f"s_sub_u32 s{4+h}, s10, s8")
                    else:
                        i("s_sub_u32 s10, s10, s8")
                        i(f"s_add_u32 s{4+h}, s{4+h}, s10")
            elif o.race:
                n = o.race
                B0 = 64 if not o.stamps else 4
                regs = [(64 + 2 * j, 65 + 2 * j) for j in range(n)] if not o.stamps else [(8 + 2*j, 9 + 2*j) if j < 3 else (46 + 2*(j-3), 47 + 2*(j-3)) for j in range(n)]
                for ra, rb in regs:
                    i(f"s_mov_b32 s{ra}, 1")
                    i(f"s_mov_b32 s{rb}, 1")
                for j, (ra, rb) in enumerate(regs):
                    order = ((ra, 0), (rb, 1)) if j % 2 == 0 else ((rb, 1), (ra, 0))
                    for r_, h in order:
                        i(f"s_load_dword s{r_}, s[24:25], {NZ * 1024 + 8192*h + 512 * j} glc")
                i(f"s_waitcnt lgkmcnt({o.racew})")
                i(f"s_add_u32 s4, s{regs[0][0]}, 0")
                i(f"s_add_u32 s5, s{regs[0][1]}, 0")
                for ra, rb in regs[1:]:
                    i(f"s_add_u32 s4, s4, s{ra}")
                    i(f"s_add_u32 s5, s5, s{rb}")
                i("s_waitcnt lgkmcnt(0)")
            else:
                for h in range(2):
                    i("s_memtime s[8:9]")
                    i("s_waitcnt lgkmcnt(0)")
                    for jj in range(o.npr):
                        i(f"s_load_dword s{12 + (jj & 3)}, s[24:25], {NZ * 1024 + 8192*h + 512 * jj} glc")
                    i("s_waitcnt lgkmcnt(0)")
                    i("s_memtime s[10:11]")
                    i("s_waitcnt lgkmcnt(0)")
                    i(f"s_sub_u32 s{4+h}, s10, s8")
            if o.stamps:
                i("s_lshl_b32 s92, s5, 16")
                i("s_or_b32 s92, s92, s4")
            i("s_getreg_b32 s6, hwreg(HW_REG_XCC_ID, 0, 3)")
            i("s_cmp_lt_u32 s4, s5")
            i("s_cselect_b32 s4, 0, 4")
            i("s_xor_b32 s4, s4, s6")
            i("s_and_b32 s4, s4, 4", "bit 2: side of half 0")
            i("s_lshl1_add_u32 s4, s4, s6")
            i("s_lshl1_add_u32 s4, s4, 0x100", "XCC << 1 | side << 4")
            a("L_flag2:")
        i(f"v_mov_b32 v{T+4}, s4")
        i("s_mov_b64 exec, 1")
        i(f"buffer_atomic_add v{T+4}, off, s[28:31], 0", "flag word: bits 8+ count the zeroing WGs")
        if o.stamps:
            i("s_memrealtime s[94:95]")
        i("s_mov_b64 exec, s[44:45]")
        if o.prio == 1:
            i("s_setprio 0")
        i("s_branch L_loads2" if o.early else "s_branch L_loads")

    stamp(0)
    if o.stamps:
        i("s_memtime s[88:89]")
    i("s_load_dwordx2 s[16:17], s[0:1], 0", "x")
    i("s_load_dwordx2 s[24:25], s[0:1], 40", "ws")
    i(f"v_lshrrev_b32 v{T}, 6, v0")
    i(f"v_and_b32 v{T+1}, 15, v0", "n = 16-byte chunk of the pixel (12 used)")
    i(f"v_readfirstlane_b32 s3, v{T}", "wave id")
    i(f"v_bfe_u32 v{T+2}, v0, 4, 2", "q = pixel of the 4")
    i(f"s_cmp_ge_u32 s2, {NWG}")
    i("s_cbranch_scc1 L_exit", "workgroups past the data exit")
    i(f"v_mul_u32_u24 v{V_OFF}, 192, v{T+2}")
    i(f"v_lshl_add_u32 v{V_OFF}, v{T+1}, 4, v{V_OFF}")
    if o.pads & 4:
        a.c("waves 4-7 touch the store code (second page) while the kernarg loads are under way")
        i("s_cmp_lt_u32 s3, 4")
        i("s_cbranch_scc1 L_back1")
        i("s_mov_b64 exec, 0")
        i("s_cmp_eq_u32 s3, 4")
        i("s_cbranch_scc1 L_padC")
        i("s_cmp_eq_u32 s3, 5")
        i("s_cbranch_scc1 L_padD")
        i("s_cmp_eq_u32 s3, 6")
        i("s_cbranch_scc1 L_padE")
        i("s_branch L_padF")
        a("L_back1:")
    if o.pads & 1:
        a.c("waves 6 and 7 touch the code further down while the kernarg loads are under way")
        i("s_cmp_lt_u32 s3, 6")
        i("s_cbranch_scc1 L_back1")
        i("s_mov_b64 exec, 0")
        i("s_cmp_eq_u32 s3, 6")
        i("s_cbranch_scc1 L_padA")
        i("s_branch L_padB")
        a("L_back1:")
    if o.xcdswz == 2:
        a.c("WGs with equal id mod 8 get neighbouring 6 KiB pieces (speed only)")
        i("s_and_b32 s42, s2, 7")
        i("s_bfe_u32 s43, s2, 0x10003")
        i("s_lshl1_add_u32 s42, s42, s43")
        i("s_andn2_b32 s43, s2, 15")
        i("s_or_b32 s42, s42, s43")
        i("s_lshl3_add_u32 s41, s42, s3")
    elif o.xcdswz > 2:
        g = o.xcdswz.bit_length() - 1
        i("s_and_b32 s42, s2, 7")
        i(f"s_bfe_u32 s43, s2, {3 | (g << 16):#x}")
        i(f"s_lshl_b32 s42, s42, {g}")
        i("s_or_b32 s42, s42, s43")
        i(f"s_andn2_b32 s43, s2, {(8 << g) - 1}")
        i("s_or_b32 s42, s42, s43")
        i("s_lshl3_add_u32 s41, s42, s3")
    elif run > 1 and not o.runw and not o.half:
        i(f"s_lshl_b32 s41, s2, {(W * run).bit_length() - 1}")
        i("s_add_u32 s41, s41, s3")
    else:
        i("s_lshl3_add_u32 s41, s2, s3")
    if run > 1 and not o.runw and (o.half or o.xcdswz):
        i("s_sub_u32 s41, s41, s3")
        i(f"s_mul_i32 s41, s41, {run}")
        i("s_add_u32 s41, s41, s3")
        if o.half:
            i("s_lshr_b32 s42, s3, 2")
            i(f"s_mul_i32 s42, s42, {4 * run - 4}")
            i("s_add_u32 s41, s41, s42")
    i(f"s_mulk_i32 s41, {UNIT * (run if o.runw else 1)}")
    if o.rot:
        i(f"s_bfe_u32 s42, s2, {o.rot}")
        i(f"s_mul_i32 s42, s42, {XBYTES >> (o.rot >> 16)}")
        i("s_add_u32 s41, s41, s42")
    i(f"s_mov_b32 s18, {XBYTES}")
    i("s_mov_b32 s19, 0x00020000")
    if run > 1 and not o.runw:
        st = W * UNIT // (2 if o.half else 1)
        i(f"s_movk_i32 s58, {st}")
        i(f"s_mov_b32 s55, {u_stride - (run - 1) * st}")
    else:
        i(f"s_mov_b32 s55, {u_stride}")
    i("s_mov_b32 exec_lo, 0x0fff0fff")
    i("s_mov_b32 s40, s41")
    i("s_mov_b32 exec_hi, exec_lo")
    i(f"s_lshr_b32 s42, s2, {NZ.bit_length() - 1}")
    if o.duty:
        i(f"s_xor_b32 s43, s3, {o.duty}")
        i("s_or_b32 s42, s42, s43")
    else:
        i("s_or_b32 s42, s42, s3")
    i("s_waitcnt lgkmcnt(0)")
    i("s_cbranch_scc0 L_zero")
    a("L_loads:")
    stamp(1)
    D = o.ldepth or L

    def load(k):
        lf = ldf
        if o.lpat:
            lf = {"s": "sc1", "n": "nt", "p": "", "w": "nt sc1", "0": "nt sc0"}[o.lpat[k % len(o.lpat)] if len(o.lpat) != 4 else o.lpat[k // 8]]
        mem("buffer_load_dwordx4", k, dreg(k), "s[16:19]", lf)

    def mfma(k):
        i(f"v_mfma_f32_16x16x32_bf16 v[{V_D}:{V_D+3}], v[{V_A}:{V_A+3}], {dreg(k)}, v[{V_D}:{V_D+3}]")

    for k in range(D):
        load(k)
        if o.early and k == o.early - 1:
            i("s_cmp_eq_u32 s42, 0")
            i("s_cbranch_scc1 L_flag")
            a("L_loads2:")
    if o.znear:
        i("s_branch L_setup")
        zero_block()
        a("L_setup:")
    if D == L:
        stamp(2)
    i("s_load_dwordx2 s[20:21], s[0:1], 24", "out")
    i("s_load_dwordx2 s[28:29], s[0:1], 32", "debug")
    i("s_mov_b32 s26, 0x10000000")
    i("s_mov_b32 s27, 0x00020000")
    i("s_movk_i32 s30, 256")
    i("s_mov_b32 s31, 0x00020000")
    i("s_mov_b64 s[44:45], exec")
    i("s_mov_b64 exec, -1")
    i("s_mov_b32 s22, s18")
    i("s_mov_b32 s23, 0x00020000")
    i(f"v_and_b32 v{V_LANE}, 63, v0")
    i(f"v_and_b32 v{T}, 15, v0", "A[i][k] = 1 where k%8 == i (i<8): sums the 4 pixels per channel")
    i(f"v_and_b32 v{T+1}, 1, v0")
    i(f"v_lshlrev_b32 v{T+1}, 4, v{T+1}")
    i(f"v_mov_b32 v{T+2}, 0x3f80")
    i(f"v_lshlrev_b32 v{T+1}, v{T+1}, v{T+2}")
    i(f"v_lshrrev_b32 v{T+2}, 1, v{T}")
    for r in range(4):
        i(f"v_cmp_eq_u32 vcc, {r}, v{T+2}")
        i(f"v_mov_b32 v{V_D+r}, 0")
        i("s_nop 0")
        i(f"v_cndmask_b32 v{V_A+r}, 0, v{T+1}, vcc")
    a.c("slot write address: wave*512 + (n/6)*256 + (n%6)*32 + (u&1)*16")
    i(f"v_bfe_u32 v{T+3}, v0, 4, 1")
    i(f"v_lshlrev_b32 v{T+3}, 4, v{T+3}")
    i("s_lshl_b32 s42, s3, 9")
    i(f"s_addk_i32 s42, {LDS_SLOT}")
    i(f"v_add_u32 v{T+3}, s42, v{T+3}")
    i(f"v_mul_u32_u24 v{T+5}, 43, v{T}")
    i(f"v_lshrrev_b32 v{T+5}, 8, v{T+5}")
    i(f"v_mul_u32_u24 v{T+6}, 6, v{T+5}")
    i(f"v_sub_u32 v{T+6}, v{T}, v{T+6}")
    i(f"v_lshl_add_u32 v{V_WRA}, v{T+5}, 8, v{T+3}")
    i(f"v_lshl_add_u32 v{V_WRA}, v{T+6}, 5, v{V_WRA}")
    i(f"v_lshlrev_b32 v{T+6}, 5, v{T}")
    i(f"v_add_u32 v{V_SCA}, {LDS_SCALE}, v{T+6}", "scale address: n*32")
    i(f"v_lshlrev_b32 v{V_L4}, 2, v{V_LANE}")
    i(f"v_lshlrev_b32 v{V_POLL}, 4, v{V_LANE}")
    i(f"v_lshrrev_b32 v{T+4}, 2, v{V_LANE}")
    i(f"v_and_b32 v{T+5}, 3, v{V_LANE}")
    i(f"v_mul_u32_u24 v{V_RDA}, 3, v{T+4}")
    i(f"v_add_lshl_u32 v{V_RDA}, v{V_RDA}, v{T+5}, 2", "slot read address: (3*(l>>2) + (l&3))*4")
    i(f"v_lshrrev_b32 v{T+6}, 4, v{V_LANE}", "line")
    i(f"v_lshlrev_b32 v{V_TRA}, 6, v{T+6}")
    i(f"v_lshl_add_u32 v{V_TRA}, v{T+5}, 4, v{V_TRA}", "transpose address: line*64 + granule*16")
    i(f"v_bfe_u32 v{T+7}, v{V_LANE}, 2, 1")
    i(f"v_lshl_add_u32 v{V_PUB}, v{T+7}, {SUBS.bit_length() - 1}, v{V_TRA}")
    i(f"v_bfe_u32 v{T+7}, v{V_LANE}, 3, 1")
    i(f"v_lshl_add_u32 v{V_PUB}, v{T+7}, 13, v{V_PUB}", "publish address: + copy")
    i(f"v_lshlrev_b32 v{T+6}, 8, v{T+6}")
    i(f"v_lshl_add_u32 v{V_ATOM}, v{T}, 2, v{T+6}", "atomic address: line*256 + (l&15)*4")
    i("s_cmp_eq_u32 s3, 0")
    i("s_cbranch_scc1 L_now" if o.latew and D < L else "s_cbranch_scc1 L_ctl")
    if o.pads & 2:
        a.c("waves 1-3 touch the store code while their loads fly")
        i("s_cmp_gt_u32 s3, 3")
        i("s_cbranch_scc1 L_now")
        i("s_mov_b64 exec, 0")
        i("s_cmp_eq_u32 s3, 2")
        i("s_cbranch_scc1 L_padD")
        i("s_cmp_eq_u32 s3, 3")
        i("s_cbranch_scc1 L_padE")
        i("s_branch L_padC")
        a("L_back2:")
        i("s_mov_b64 exec, -1")
    i("s_branch L_now")
    a("L_exit:")
    i("s_endpgm")
    def ctl_block():
        a.c("wave 0: weights, flag and hand-off addresses (the extra loads only make its counted waits stricter)")
        i("s_load_dwordx2 s[32:33], s[0:1], 8", "w_down")
        i("s_load_dwordx2 s[36:37], s[0:1], 16", "w_up")
        i("s_movk_i32 s34, 1152")
        i("s_mov_b32 s35, 0x00020000")
        i("s_movk_i32 s38, 1152")
        i("s_mov_b32 s39, 0x00020000")
        for r in range(21):
            i(f"v_mov_b32 v{V_WD+r}, 0")
        i(f"v_and_b32 v{T+1}, 31, v0")
        i(f"v_lshrrev_b32 v{T+4}, 5, v0")
        i(f"v_mul_u32_u24 v{V_WA}, 36, v{T+1}")
        i(f"v_mad_u32_u24 v{V_WA}, v{T+4}, 6, v{V_WA}")
        i(f"v_lshlrev_b32 v{V_WA+1}, 1, v0")
        i("s_waitcnt lgkmcnt(0)")
        pad("L_padA", "L_back1") if o.pads & 1 else None
        def weights():
            for ii in range(3):
                for jj in range(3):
                    i(f"buffer_load_short_d16_hi v{V_WD+3*ii+jj}, v{V_WA}, s[32:35], 0 offen offset:{12*ii+2*jj}")
            for j in range(6):
                for h in range(2):
                    i(f"buffer_load_short_d16_hi v{V_WU+2*j+h}, v{V_WA+1}, s[36:39], 0 offen offset:{192*j+128*h}")

        weights()
        if D == L:
            i("s_mov_b64 exec, 1")
            i(f"buffer_load_dword v{V_FLAG}, off, s[28:31], 0 sc1", "zeroing-done flag")
            i("s_mov_b64 exec, -1")
        i("s_mov_b32 s46, 0x88888888")
        i("s_mov_b32 s47, s46")
        i(f"s_mov_b32 s51, {f2u(float(NWG // R)):#x}", "WGs per replica, as float")
        i("s_mov_b32 s50, 0x100000", "spin budget")

    late = o.latew and D < L
    if not late:
        a("L_ctl:")
        ctl_block()
    a("L_now:")
    if o.otouch:
        a.c("wave 3 touches the pages of out this WG will write (address translation warm-up; the value is unused)")
        i(f"s_cmp_lg_u32 s3, {o.otouch}")
        i("s_cbranch_scc1 L_now2")
        i(f"v_mul_lo_u32 v{T}, v{V_LANE}, s55")
        i("s_waitcnt lgkmcnt(0)")
        i("s_mov_b32 exec_hi, 0")
        i(f"buffer_load_dword v{T+1}, v{T}, s[20:23], s41 offen nt")
        i("s_mov_b32 exec_hi, -1")
        a("L_now2:")
    if D < L:
        i("s_mov_b64 exec, s[44:45]")
        for k in range(D, L):
            i(f"s_waitcnt vmcnt({D - 1})")
            load(k)
            mfma(k - D)
            if k == o.kflag:
                i("s_cmp_lg_u32 s3, 0")
                i("s_cbranch_scc1 L_nofl")
                if late:
                    i("s_mov_b64 exec, -1")
                    ctl_block()
                i("s_mov_b64 exec, 1")
                i(f"buffer_load_dword v{V_FLAG}, off, s[28:31], 0 sc1", "zeroing-done flag")
                if o.touch == 1:
                    i(f"buffer_load_dword v{V_ZA}, off, s[24:27], 0 offset:384")
                elif o.touch == 2:
                    i("s_lshl_b32 s42, s2, 7")
                    i(f"s_add_u32 s42, s42, {NZ * 1024 + 16384}")
                    i(f"buffer_store_dword v{V_D}, off, s[24:27], s42 sc1", "address translation for the hand-off page (private spare line)")
                i("s_mov_b64 exec, s[44:45]")
                a("L_nofl:")
        i("s_mov_b64 exec, -1")
        stamp(2)
    for k in range(L - D, L):
        i(f"s_waitcnt vmcnt({L - 1 - k})")
        mfma(k)
    stamp(3)
    if o.prio == 2:
        i("s_setprio 0")
    if o.stamps:
        if not o.cyc:
            i("s_mov_b32 s68, 0")
        if o.x9 == "atom":
            i("s_mov_b32 s78, 0")
    i("s_mov_b32 exec_lo, 0x0fff0fff")
    i("s_mov_b32 exec_hi, 0")
    i("s_cmp_lg_u32 s3, 0")
    i("s_nop 4" if o.prio != 2 else "s_nop 3")
    i(f"ds_write_b128 v{V_WRA}, v[{V_D}:{V_D+3}]")
    i("s_mov_b64 exec, -1")
    i("s_cbranch_scc0 L_ctl2")
    i("s_waitcnt lgkmcnt(0)")
    i("s_barrier")
    i("s_branch L_wait2")
    a("L_flagspin:")
    a.c("the zeroing-done flag was not up yet when this wave read it")
    i(f"buffer_load_dword v{V_FLAG}, off, s[28:31], 0 sc1")
    i("s_sub_u32 s50, s50, 1")
    i("s_cbranch_scc1 L_flagok")
    i("s_waitcnt vmcnt(0)")
    a("L_ctl2:")
    i(f"v_readfirstlane_b32 s43, v{V_FLAG}")
    i(f"s_cmpk_lt_u32 s43, {NZ << 8:#x}")
    i("s_cbranch_scc1 L_flagspin")
    a("L_flagok:")
    pad("L_padB", "L_back1") if o.pads & 1 else None
    a.c("replica = 2*q + bit 3 of the id; q depends on the id and the flag word only, so all replicas hold the same number of WGs")
    if near:
        i("s_getreg_b32 s54, hwreg(HW_REG_XCC_ID, 0, 3)")
        i("s_lshr_b32 s42, s43, 1", "XCC of WG 0")
        i("s_add_u32 s42, s42, s2")
        i("s_lshr_b32 s43, s43, 2")
        i("s_xor_b32 s42, s42, s43", "bit 2: side the id is expected on ^ side of region 0")
        i("s_xor_b32 s52, s54, s43")
        i("s_bfe_u32 s42, s42, 0x10002")
        i("s_bfe_u32 s52, s52, 0x10002")
        i("s_and_b32 s53, s54, 1" if not o.g2 else "s_mov_b32 s53, 0")
        if o.g2:
            i("s_mov_b32 s6, 0x0f0f0f0f")
            i("s_mov_b32 s7, s6")
    else:
        i("s_bfe_u32 s42, s2, 0x10002")
        i("s_bfe_u32 s52, s2, 0x10001")
        i("s_and_b32 s53, s2, 1")
    i(f"s_bfe_u32 s43, s2, {0x10003 if R == 4 else 0x20003:#x}")
    i("s_lshl2_add_u32 s48, s42, s43")
    i("s_lshl_b32 s48, s48, 11", "accumulators: q*8192 + sub*2048")
    i(f"s_add_u32 s49, s48, {4*LS}")
    i(f"s_lshl{1 if R == 4 else 2}_add_u32 s56, s42, s43")
    i("s_lshl_b32 s56, s56, 9")
    i(f"s_addk_i32 s56, {PUB0}", "published line: base + replica*512 (+ copy)")
    i("s_add_u32 s57, s56, 256")
    i(f"s_lshl{2 if R == 4 else 1}_add_u32 s52, s52, s53")
    i(f"s_lshl_b32 s52, s52, {SUBS.bit_length() - 1}")
    i(f"s_addk_i32 s52, {PUB0}", "polled copy: base + q*8192 + sub*stride")
    i("s_mov_b32 s43, 0x36800000", "2^-18 (1/pixels) folded into w_down")
    for r in range(9):
        i(f"v_mul_f32 v{V_WD+r}, s43, v{V_WD+r}")
    i("s_mov_b32 s42, 0xbfb8aa3b", "-log2(e)")
    i("s_waitcnt lgkmcnt(0)")
    i("s_barrier")
    cyc(0)
    for k in range(W):
        i(f"ds_read2st64_b32 v[{Q+2*k}:{Q+2*k+1}], v{V_RDA} offset0:{LDS_SLOT//256+2*k} offset1:{LDS_SLOT//256+2*k+1}")
    S0, S1 = T, T + 1
    step = 1
    while step < W:
        for k in range(0, W, 2 * step):
            if step == 1:
                i(f"s_waitcnt lgkmcnt({W-2-k if not o.cyc else 0})")
            dst = T + 2 if step * 2 >= W else Q + 2 * k
            i(f"v_pk_add_f32 v[{dst}:{dst+1}], v[{Q+2*k}:{Q+2*k+1}], v[{Q+2*(k+step)}:{Q+2*(k+step)+1}]")
        step *= 2
    i(f"v_cndmask_b32 v{S0}, v{T+2}, 1.0, s[46:47]")
    i(f"v_cndmask_b32 v{S1}, v{T+3}, 1.0, s[46:47]")
    i(f"buffer_atomic_add_f32 v{S0}, v{V_ATOM}, s[24:27], s48 offen sc0")
    i(f"buffer_atomic_add_f32 v{S1}, v{V_ATOM}, s[24:27], s49 offen sc0")
    stamp(4)
    cyc(1)
    i(f"v_cndmask_b32 v{T+2}, v{T+2}, 1.0, s[46:47]")
    i(f"v_cndmask_b32 v{T+3}, v{T+3}, 1.0, s[46:47]")
    i("s_waitcnt vmcnt(1)")
    i(f"v_add_f32 v{T+2}, v{T+2}, v{S0}")
    i("s_waitcnt vmcnt(0)")
    i(f"v_add_f32 v{T+3}, v{T+3}, v{S1}")
    x9("atom")
    cyc(2)
    a.c("transpose through LDS: lane (line, copy, granule) gets one whole 16-byte granule")
    i(f"ds_write2st64_b32 v{V_L4}, v{T+2}, v{T+3} offset0:0 offset1:1")
    i(f"ds_read_b128 v[{P}:{P+3}], v{V_TRA}")
    i(f"ds_read_b128 v[{P+4}:{P+7}], v{V_TRA} offset:256")
    i("s_waitcnt lgkmcnt(1)" if not o.stamps else "s_waitcnt lgkmcnt(0)")
    i(f"v_cmp_eq_f32 vcc, s51, v{P+3}")
    i("s_and_b64 exec, vcc, vcc" if not o.g2 else "s_and_b64 exec, vcc, s[6:7]")
    i("s_cbranch_scc0 L_nopubA")
    i(f"buffer_store_dwordx4 v[{P}:{P+3}], v{V_PUB}, s[24:27], s56 offen sc1")
    a("L_nopubA:")
    i("s_mov_b64 exec, -1")
    i("s_waitcnt lgkmcnt(0)")
    i(f"v_cmp_eq_f32 vcc, s51, v{P+7}")
    i("s_and_b64 exec, vcc, vcc" if not o.g2 else "s_and_b64 exec, vcc, s[6:7]")
    i("s_cbranch_scc0 L_nopubB")
    i(f"buffer_store_dwordx4 v[{P+4}:{P+7}], v{V_PUB}, s[24:27], s57 offen sc1")
    a("L_nopubB:")
    i("s_mov_b64 exec, -1")
    cyc(3)
    a.c("poll the published replica sums")
    a("L_poll:")
    if o.pollsleep:
        i(f"s_sleep {o.pollsleep}")
    NP = R // 2
    for k in range(NP):
        off = f" offset:{1024*k}" if k else ""
        i(f"buffer_load_dwordx4 v[{Q+4*k}:{Q+4*k+3}], v{V_POLL}, s[24:27], s52 offen{off} sc1")
    i("s_sub_u32 s50, s50, 1")
    i("s_cbranch_scc1 L_done")
    for k in range(NP):
        i(f"s_waitcnt vmcnt({NP-1-k})")
        if k == 0:
            i(f"v_cmp_eq_f32 vcc, s51, v{Q+3}")
        else:
            i(f"v_cmp_eq_f32 s[4:5], s51, v{Q+4*k+3}")
            i("s_and_b64 vcc, vcc, s[4:5]")
    i("s_cmp_eq_u64 vcc, -1")
    i("s_cbranch_scc0 L_poll")
    a("L_done:")
    stamp(5)
    cyc(4)
    if R == 8:
        i(f"v_pk_add_f32 v[{Q}:{Q+1}], v[{Q}:{Q+1}], v[{Q+8}:{Q+9}]")
        i(f"v_pk_add_f32 v[{Q+4}:{Q+5}], v[{Q+4}:{Q+5}], v[{Q+12}:{Q+13}]")
        i(f"v_add_f32 v{Q+2}, v{Q+2}, v{Q+10}")
        i(f"v_add_f32 v{Q+6}, v{Q+6}, v{Q+14}")
    i(f"v_pk_add_f32 v[{P}:{P+1}], v[{Q}:{Q+1}], v[{Q+4}:{Q+5}]")
    i(f"v_pk_add_f32 v[{P+4}:{P+5}], v[{Q}:{Q+1}], v[{Q+4}:{Q+5}]")
    i(f"v_add_f32 v{P+2}, v{Q+2}, v{Q+6}")
    i(f"v_add_f32 v{P+6}, v{Q+2}, v{Q+6}")
    i(f"v_permlane32_swap_b32 v{P+4}, v{P}")
    i(f"v_permlane32_swap_b32 v{P+5}, v{P+1}")
    i(f"v_permlane32_swap_b32 v{P+6}, v{P+2}")
    i(f"v_pk_add_f32 v[{P}:{P+1}], v[{P}:{P+1}], v[{P+4}:{P+5}]")
    i(f"v_add_f32 v{P+2}, v{P+2}, v{P+6}")
    for r in range(3):
        i(f"v_cvt_pk_bf16_f32 v{P+r}, 0, v{P+r}", "sum rounded to bf16, left in the high half" if r == 0 else None)
    H = P + 4
    for jj in range(3):
        i(f"v_mul_f32 v{H+jj}, v{P}, v{V_WD+jj}")
    for ii in (1, 2):
        for jj in range(3):
            i(f"v_fmac_f32 v{H+jj}, v{P+ii}, v{V_WD+3*ii+jj}")
    for dpp in ("quad_perm:[1,0,3,2]", "quad_perm:[2,3,0,1]", "row_half_mirror", "row_mirror"):
        for jj in range(3):
            i(f"v_add_f32_dpp v{H+jj}, v{H+jj}, v{H+jj} {dpp} row_mask:0xf bank_mask:0xf")
    for jj in range(3):
        i(f"v_add_f32_dpp v{P}, v{H+jj}, v{H+jj} row_bcast:15 row_mask:0xa bank_mask:{1 << jj:#x}",
          "h[j] -> lane 16 + 4*(j%3) + 32*(j/3)" if jj == 0 else None)
    i(f"v_cvt_pk_bf16_f32 v{H}, 0, v{P}", "h (bf16)")
    i(f"v_mul_f32 v{P}, s42, v{H}")
    i(f"v_exp_f32 v{P}, v{P}")
    i("s_nop 0")
    i(f"v_add_f32 v{P}, 1.0, v{P}")
    i(f"v_rcp_f32 v{P}, v{P}")
    i("s_nop 0")
    i(f"v_mul_f32 v{H}, v{H}, v{P}")
    i(f"v_cvt_pk_bf16_f32 v{H}, 0, v{H}", "silu(h) (bf16)")
    i("s_nop 0")
    for j in range(6):
        i(f"v_readlane_b32 s{8+j}, v{H}, {16 + 4*(j % 3) + 32*(j//3)}")
    Z = P
    sel = lambda j: "op_sel:[0,1,0] op_sel_hi:[1,1,1]" if j & 1 else "op_sel:[0,0,0] op_sel_hi:[1,0,1]"
    i(f"v_pk_mul_f32 v[{Z}:{Z+1}], v[{V_WU}:{V_WU+1}], s[8:9] op_sel:[0,0] op_sel_hi:[1,0]")
    for j in range(1, 6):
        sp = 8 + (j & ~1)
        i(f"v_pk_fma_f32 v[{Z}:{Z+1}], v[{V_WU+2*j}:{V_WU+2*j+1}], s[{sp}:{sp+1}], v[{Z}:{Z+1}] {sel(j)}")
    i(f"v_cvt_pk_bf16_f32 v{Z}, 0, v{Z}", "z (bf16)")
    i(f"v_cvt_pk_bf16_f32 v{Z+1}, 0, v{Z+1}")
    i(f"v_pk_mul_f32 v[{Z}:{Z+1}], v[{Z}:{Z+1}], s[42:43] op_sel:[0,0] op_sel_hi:[1,0]")
    i(f"v_exp_f32 v{Z}, v{Z}")
    i(f"v_exp_f32 v{Z+1}, v{Z+1}")
    i("s_nop 0")
    i(f"v_pk_add_f32 v[{Z}:{Z+1}], v[{Z}:{Z+1}], 1.0 op_sel_hi:[1,0]")
    i(f"v_rcp_f32 v{Z}, v{Z}")
    i(f"v_rcp_f32 v{Z+1}, v{Z+1}")
    i(f"v_cvt_pk_bf16_f32 v{Z}, 0, v{Z}", "sigmoid (bf16)")
    i(f"v_cvt_pk_bf16_f32 v{Z+1}, 0, v{Z+1}")
    i(f"ds_write2st64_b32 v{V_L4}, v{Z}, v{Z+1} offset0:{LDS_SCALE//256} offset1:{LDS_SCALE//256+1}")
    cyc(5)
    i("s_waitcnt lgkmcnt(0)")
    i("s_barrier")
    cyc(6)
    if o.reset:
        i("s_cmp_lg_u32 s2, 0")
        i("s_cbranch_scc1 L_go")
        a.c("every WG has read the flag by now: leave d_debug as it was found")
        i(f"v_mov_b32 v{T}, 0")
        i("s_mov_b64 exec, 1")
        i(f"buffer_store_dword v{T}, off, s[28:31], 0 sc1")
        i("s_mov_b64 exec, -1")
    i("s_branch L_go")
    if not o.znear:
        zero_block()
    if o.split:
        a(".p2align 12")
    a("L_wait2:")
    pad("L_padC", "L_padF") if o.pads & 2 else None
    pad("L_padC", "L_back1") if o.pads & 4 else None
    i("s_barrier")
    a("L_go:")
    i(f"ds_read_b128 v[{V_SC}:{V_SC+3}], v{V_SCA}")
    i(f"ds_read_b128 v[{V_SC+4}:{V_SC+7}], v{V_SCA} offset:16")
    i("s_mov_b64 exec, s[44:45]")
    i("s_mov_b32 s40, s41")
    stamp(6)
    i("s_mov_b32 s43, 0xffff0000")
    if o.patO:
        if o.patby == "xcc":
            i("s_getreg_b32 vcc_lo, hwreg(HW_REG_XCC_ID, 0, 1)")
        else:
            i("s_lshr_b32 vcc_lo, s3, 2")
        i("s_mov_b32 vcc_hi, 0")
    for k in range(L):
        d = V_DATA + 4 * k
        for r in range(4):
            i(f"v_lshlrev_b32 v{T+2*r}, 16, v{d+r}")
            i(f"v_and_b32 v{T+2*r+1}, s43, v{d+r}")
        if k == 0:
            i("s_waitcnt lgkmcnt(0)")
        for r in range(4):
            i(f"v_pk_mul_f32 v[{T+2*r}:{T+2*r+1}], v[{T+2*r}:{T+2*r+1}], v[{V_SC+2*r}:{V_SC+2*r+1}]")
        for r in range(4):
            i(f"v_cvt_pk_bf16_f32 v{d+r}, v{T+2*r}, v{T+2*r+1}")
        if o.sdepth and k >= o.sdepth:
            i(f"s_waitcnt vmcnt({o.sdepth - 1})")
        if o.pat:
            fl = {"s": "sc1", "n": "nt", "p": "", "w": "nt sc1", "0": "sc0", "z": "sc0 sc1"}[o.pat[k * len(o.pat) // L] if not o.patrep else o.pat[k % len(o.pat)]]
        else:
            fl = stf2 if k < o.nst2 or k >= L - o.nst2e else stf
        FL = {"s": "sc1", "n": "nt", "p": "", "w": "nt sc1"}
        if o.patO and o.patO[k * len(o.patO) // L] != o.pat[k * len(o.pat) // L]:
            i(f"s_cbranch_vccnz L_alt{k}")
            i(f"buffer_store_dwordx4 v[{d}:{d+3}], v{V_OFF}, s[20:23], s40 offen {fl}".rstrip())
            i(f"s_branch L_nx{k}")
            a(f"L_alt{k}:")
            i(f"buffer_store_dwordx4 v[{d}:{d+3}], v{V_OFF}, s[20:23], s40 offen {FL[o.patO[k * len(o.patO) // L]]}".rstrip())
            a(f"L_nx{k}:")
            if k != L - 1:
                i("s_add_u32 s40, s40, s55")
        else:
            mem("buffer_store_dwordx4", k, f"v[{d}:{d+3}]", "s[20:23]", fl)
        if k == 0:
            cyc(7)
        if o.x9 == f"st{k}":
            i("s_waitcnt vmcnt(0)")
            i("s_memrealtime s[78:79]")
        if o.pads & 6 and k in (8, 17, 26):
            pad({8: "L_padD", 17: "L_padE", 26: "L_padF"}[k], "L_back2" if o.pads & 2 else "L_back1")
        if o.wb and k == o.wbk:
            i(f"s_cmp_ge_u32 s2, {o.wb}")
            i("s_cbranch_scc1 L_nowb")
            i(f"s_cmp_lg_u32 s3, {o.wbwave}")
            i("s_cbranch_scc1 L_nowb")
            if o.wbwait:
                i("s_waitcnt vmcnt(0)")
            i("buffer_wbl2 sc1")
            a("L_nowb:")
        if o.sbar and k % o.sbar == o.sbar - 1 and k != L - 1:
            i("s_barrier")
    if o.stamps:
        stamp(7)
        i("s_waitcnt vmcnt(0)")
        stamp(8)
        i("s_memtime s[90:91]")
        i("s_mov_b64 exec, -1")
        i("s_getreg_b32 s42, hwreg(HW_REG_HW_ID)")
        i("s_getreg_b32 s43, hwreg(HW_REG_XCC_ID)")
        i("s_waitcnt lgkmcnt(0)")
        i(f"v_mov_b32 v{V_ZA}, 0")
        for k in range(nstamp[0] if not o.cyc else 9):
            i(f"v_writelane_b32 v{V_ZA}, s{60+2*k}, {k}")
        i(f"v_writelane_b32 v{V_ZA}, s78, 9")
        i(f"v_writelane_b32 v{V_ZA}, s92, 10")
        i(f"v_writelane_b32 v{V_ZA}, s94, 13")
        i("s_sub_u32 s90, s90, s88")
        i(f"v_writelane_b32 v{V_ZA}, s90, 11")
        i("s_sub_u32 s50, 0x100000, s50")
        i(f"v_writelane_b32 v{V_ZA}, s50, 12")
        i(f"v_writelane_b32 v{V_ZA}, s42, 14")
        i(f"v_writelane_b32 v{V_ZA}, s43, 15")
        i("s_lshl_b32 s42, s2, 4")
        i("s_add_u32 s42, s42, s3")
        i("s_lshl_b32 s42, s42, 6")
        i("s_add_u32 s42, s42, 0x4000000")
        i("s_mov_b64 exec, 0xffff")
        i(f"buffer_store_dword v{V_ZA}, v{V_L4}, s[24:27], s42 offen")
        if o.probe:
            pa, pb, pk, pw = [int(x) for x in o.probe.split(",")]
            i(f"s_cmp_lg_u32 s3, {o.probewave}")
            i("s_cbranch_scc1 L_end")
            i(f"s_cmp_lg_u32 s2, {pw}")
            i("s_cbranch_scc1 L_end")
            i(f"s_sub_u32 s42, s{60+2*pb}, s{60+2*pa}")
            i(f"s_mul_i32 s42, s42, {pk}")
            i("s_add_u32 s42, s42, 4000")
            i("s_min_u32 s42, s42, 20000")
            a("L_probe:")
            i("s_memrealtime s[50:51]")
            i("s_waitcnt lgkmcnt(0)")
            i("s_sub_u32 s43, s50, s60")
            i("s_cmp_lt_u32 s43, s42")
            i("s_cbranch_scc1 L_probe")
    a("L_end:")
    i("s_endpgm")
    a(f""".section .rodata,"a"
.p2align 6
.amdhsa_kernel {KNAME}
  .amdhsa_next_free_vgpr {NV}
  .amdhsa_next_free_sgpr {96 if o.stamps else (80 if o.race else 64)}
  .amdhsa_accum_offset {(NV + 3) // 4 * 4}
  .amdhsa_group_segment_fixed_size 0
  .amdhsa_kernarg_size 48
  .amdhsa_user_sgpr_count 2
  .amdhsa_user_sgpr_kernarg_segment_ptr 1
  .amdhsa_system_sgpr_workgroup_id_x 1
  .amdhsa_float_denorm_mode_32 3
.end_amdhsa_kernel""")
    return a.text()


def main():
    ap = argparse.ArgumentParser()
    ap.add_argument("-o", default="-")
    ap.add_argument("--xcdswz", type=int, default=0)
    ap.add_argument("--otouch", type=int, default=0)
    ap.add_argument("--sdepth", type=int, default=0)
    ap.add_argument("--reset", type=int, default=1)
    ap.add_argument("--pat", default="s" * 17 + "n" * 15)
    ap.add_argument("--patrep", type=int, default=0)
    ap.add_argument("--patO", default="")
    ap.add_argument("--patby", default="xcc")
    ap.add_argument("--lpat", default="")
    ap.add_argument("--ldepth", type=int, default=12)
    ap.add_argument("--run", type=int, default=4)
    ap.add_argument("--runw", type=int, default=0)
    ap.add_argument("--rot", type=lambda x: int(x, 0), default=0)
    ap.add_argument("--pollsleep", type=int, default=0)
    ap.add_argument("--half", type=int, default=0)
    ap.add_argument("--kflag", type=int, default=31)
    ap.add_argument("--early", type=int, default=0)
    ap.add_argument("--znear", type=int, default=1)
    ap.add_argument("--cyc", type=int, default=0)
    ap.add_argument("--own", type=int, default=1)
    ap.add_argument("--npr", type=int, default=8)
    ap.add_argument("--nth", type=int, default=8)
    ap.add_argument("--pstr", type=int, default=512)
    ap.add_argument("--ack", type=int, default=0)
    ap.add_argument("--ackall", type=int, default=0)
    ap.add_argument("--wb", type=int, default=0)
    ap.add_argument("--wbk", type=int, default=31)
    ap.add_argument("--wbwave", type=int, default=7)
    ap.add_argument("--wbwait", type=int, default=1)
    ap.add_argument("--latew", type=int, default=0)
    ap.add_argument("--duty", type=int, default=3)
    ap.add_argument("--prio", type=int, default=2)
    ap.add_argument("--pbase", type=int, default=16384)
    ap.add_argument("--warm2", type=int, default=0)
    ap.add_argument("--R", type=int, default=4)
    ap.add_argument("--g2", type=int, default=0)
    ap.add_argument("--race", type=int, default=0)
    ap.add_argument("--racew", type=int, default=7)
    ap.add_argument("--gap", type=int, default=4)
    ap.add_argument("--abba", type=int, default=0)
    ap.add_argument("--touch", type=int, default=0)
    ap.add_argument("--near", type=int, default=1)
    ap.add_argument("--pads", type=int, default=4)
    ap.add_argument("--split", type=int, default=1)
    ap.add_argument("--wgrp", type=int, default=1)
    ap.add_argument("--sbar", type=int, default=0)
    ap.add_argument("--ldflags", default="nt")
    ap.add_argument("--stflags", default="nt")
    ap.add_argument("--stflags2", default="nt+sc1")
    ap.add_argument("--nst2", type=int, default=16)
    ap.add_argument("--nst2e", type=int, default=0)
    ap.add_argument("--stamps", type=int, default=0)
    ap.add_argument("--probe", default="")
    ap.add_argument("--probewave", type=int, default=0)
    ap.add_argument("--x9", default="")
    o = ap.parse_args()
    t = gen(o)
    if o.o == "-":
        sys.stdout.write(t)
    else:
        open(o.o, "w").write(t)


if __name__ == "__main__":
    main()
```
